```python
import torch

def _softmax(x, axis=-1):
    return torch.softmax(x, dim=axis)
def _gelu(x):
    return torch.nn.functional.gelu(x, approximate="tanh")
def _silu(x):
    return torch.nn.functional.silu(x)
def _sigmoid(x):
    return torch.sigmoid(x)
def _layernorm(x, axis=-1, eps=1e-5):
    m = x.mean(dim=axis, keepdim=True)
    v = x.var(dim=axis, keepdim=True, unbiased=False)
    return (x - m) / torch.sqrt(v + eps)
def _scatter_add(tgt, idx, src, axis=0):
    return tgt.clone().index_add_(axis, idx, src)
def _segment_sum(src, seg, n):
    out = torch.zeros((n,) + src.shape[1:], dtype=src.dtype)
    return out.index_add_(0, seg, src)
def _pad(x, pw):
    flat = tuple(v for pair in reversed(pw) for v in pair)
    return torch.nn.functional.pad(x, flat)

kernel_name = 'interleave_layers__ssm_conv_h3__linear_attn_block__prompt'

def setup_inputs():

    _w = (lambda a: (lambda t: t.to(torch.bfloat16) if t.is_floating_point() else t)(torch.as_tensor(a)))
    def _A_setup():
        B, S, D = 1, 2048, 1024
        ks = 4
        return {
            "q": _w((lambda *s: torch.randn(*s, dtype=torch.bfloat16) * 0.05)(B, S, D)),
            "k": _w((lambda *s: torch.randn(*s, dtype=torch.bfloat16) * 0.4)(B, S, D)),
            "v": _w((lambda *s: torch.randn(*s, dtype=torch.bfloat16) * 0.4)(B, S, D)),
            "shift_k": _w((lambda *s: torch.randn(*s, dtype=torch.bfloat16) * 0.4)(D, ks) * 0.5),
            "ssm_k": _w((lambda *s: torch.randn(*s, dtype=torch.bfloat16) * 0.4)(D, S) * (1.0 / S ** 0.5)),
            "ssm_D": _w((lambda *s: torch.randn(*s, dtype=torch.bfloat16) * 0.4)(D)),
        }
    _A_in = _A_setup()

    def _B_setup():
        B, S, D = 1, 2048, 1024
        return {
            "x": _w((lambda *s: torch.randn(*s, dtype=torch.bfloat16) * 0.05)(B, S, D)),
            "wqkv": _w((lambda *s: torch.randn(*s, dtype=torch.bfloat16) * 0.1)(D, 3 * D)),
            "wo": _w((lambda *s: torch.randn(*s, dtype=torch.bfloat16) * 0.05)(D, D)),
        }
    _B_in = _B_setup()

    return {
        "A_q": _A_in["q"],
        "A_k": _A_in["k"],
        "A_v": _A_in["v"],
        "A_shift_k": _A_in["shift_k"],
        "A_ssm_k": _A_in["ssm_k"],
        "A_ssm_D": _A_in["ssm_D"],
        "B_x": _B_in["x"],
        "B_wqkv": _B_in["wqkv"],
        "B_wo": _B_in["wo"],
    }

def reference(A_q, A_k, A_v, A_shift_k, A_ssm_k, A_ssm_D, B_x, B_wqkv, B_wo):
    def _A_ref(q, k, v, shift_k, ssm_k, ssm_D):
        B, S, D = q.shape
        ks = shift_k.shape[-1]
        k_pad = _pad(k, ((0, 0), (ks - 1, 0), (0, 0)))
        k_shift = torch.zeros_like(k)
        for t in range(ks):
            k_shift = k_shift + k_pad[:, t:t + S, :] * shift_k[:, ks - 1 - t][None, None, :]
        kv = k_shift * v
        L = 2 * S
        kv_pad = _pad(kv, ((0, 0), (0, S), (0, 0)))
        kf_pad = _pad(ssm_k, ((0, 0), (0, S)))
        kv_f = (lambda x, axes=(-2,-1): torch.fft.rfft2(x.float(), dim=axes))(kv_pad[:, None, :, :], axes=(1, 2))
        kf_f = (lambda x, axes=(-2,-1): torch.fft.rfft2(x.float(), dim=axes))(kf_pad[:, None, :], axes=(1, 2))
        kf_f = (lambda x, *d: x.permute(*d))(kf_f, 1, 2, 0)
        y_f = kv_f * kf_f[None, :, :, :]
        y = (lambda x, s, axes=(-2,-1): torch.fft.irfft2(x, s=s, dim=axes).to(torch.bfloat16))(y_f, (1, L), axes=(1, 2))[:, 0, :S, :]
        y = y + kv * ssm_D[None, None, :]
        return q * y

    def _B_ref(x, wqkv, wo):
        B, S, D = x.shape
        H = 32; Dh = D // H
        qkv = (lambda x, *d: x.permute(*d))((x @ wqkv).reshape(B, S, 3, H, Dh), 2, 0, 3, 1, 4)
        q, k, v = qkv[0], qkv[1], qkv[2]
        phi = lambda t: torch.where(t > 0, t + 1, torch.exp(t)) + 1e-6
        pq, pk = phi(q), phi(k)
        kv = torch.einsum("bhsd,bhse->bhde", pk, v)
        z = torch.einsum("bhsd->bhd", pk)
        num = torch.einsum("bhqd,bhde->bhqe", pq, kv)
        den = torch.einsum("bhqd,bhd->bhq", pq, z)[..., None] + 1e-6
        o = num / den
        return (lambda x, *d: x.permute(*d))(o, 0, 2, 1, 3).reshape(B, S, D) @ wo

    x = A_q
    x = x + _A_ref(_layernorm(x, axis=-1), A_k, A_v, A_shift_k, A_ssm_k, A_ssm_D)
    x = x + _B_ref(_layernorm(x, axis=-1), B_wqkv, B_wo)
    x = x + _A_ref(_layernorm(x, axis=-1), A_k, A_v, A_shift_k, A_ssm_k, A_ssm_D)
    x = x + _B_ref(_layernorm(x, axis=-1), B_wqkv, B_wo)
    return x
```

```python
def v(a, n=1):
    return f"v{a}" if n == 1 else f"v[{a}:{a+n-1}]"
def a_(a, n=1):
    return f"a{a}" if n == 1 else f"a[{a}:{a+n-1}]"
def s(a, n=1):
    return f"s{a}" if n == 1 else f"s[{a}:{a+n-1}]"

KA = dict(q=0, k=8, v=16, shift_k=24, ssm_k=32, ssm_D=40, bx=48, wqkv=56, wo=64, out=72, dbg=80, ws=88)

class Kern:
    def __init__(self, name, grid, block, lds, vgpr=128, sgpr=96, accum=None):
        self.name = name; self.grid = grid; self.block = block; self.lds = lds
        self.vgpr = vgpr; self.sgpr = sgpr; self.accum = accum
        self.L = []
        self.nl = 0
    def __call__(self, t):
        for line in t.strip("\n").split("\n"):
            line = line.strip()
            if line:
                self.L.append("  " + line)
    def label(self, n):
        self.L.append(f"{n}:")
    def newlabel(self, base="L"):
        self.nl += 1
        return f"{self.name}_{base}{self.nl}"
    def ldptr(self, sreg, which):
        self(f"s_load_dwordx2 {s(sreg,2)}, s[0:1], {KA[which]}")
    def srd(self, sb, sp, off, size):
        if off:
            self(f"s_add_u32 {s(sb)}, {s(sp)}, {off:#x}")
            self(f"s_addc_u32 {s(sb+1)}, {s(sp+1)}, 0")
            self(f"s_and_b32 {s(sb+1)}, {s(sb+1)}, 0xffff")
        else:
            self(f"s_mov_b32 {s(sb)}, {s(sp)}")
            self(f"s_and_b32 {s(sb+1)}, {s(sp+1)}, 0xffff")
        self(f"s_mov_b32 {s(sb+2)}, {size:#x}")
        self(f"s_mov_b32 {s(sb+3)}, 0x00020000")
    STAMP = False
    def stamp(self, i):
        if Kern.STAMP:
            self(f"s_memtime s[{64+2*i}:{65+2*i}]")
            self.nst = max(getattr(self, "nst", 0), i+1)
    def stamp_flush(self, wsptr_sreg, slot):
        if not Kern.STAMP: return
        n = self.nst
        self("s_waitcnt lgkmcnt(0) vmcnt(0)")
        self.srd(92, wsptr_sreg, 200*(1<<20) + slot*(1<<20), 1<<20)
        self("v_mbcnt_lo_u32_b32 v1, -1, 0\nv_mbcnt_hi_u32_b32 v1, -1, v1")
        self("v_cmp_eq_u32 vcc, 0, v1")
        self("s_and_saveexec_b64 s[90:91], vcc")
        self("s_lshl_b32 s89, s2, 4")
        self("s_add_u32 s89, s89, s88")
        self("s_lshl_b32 s89, s89, 7")
        self("v_mov_b32 v2, s89")
        for i in range(n):
            self(f"v_mov_b32 v3, s{64+2*i}")
            self(f"buffer_store_dword v3, v2, s[92:95], 0 offen offset:{4*i}")
        self("s_mov_b64 exec, s[90:91]")
    def text(self):
        o = [f".globl {self.name}", ".p2align 8", f".type {self.name},@function", f"{self.name}:"]
        o += self.L
        return "\n".join(o) + "\n"
    def desc(self):
        acc = self.accum if self.accum is not None else (self.vgpr + 3) // 4 * 4
        return f""".amdhsa_kernel {self.name}
  .amdhsa_next_free_vgpr {self.vgpr}
  .amdhsa_next_free_sgpr {self.sgpr}
  .amdhsa_accum_offset {acc}
  .amdhsa_group_segment_fixed_size 0
  .amdhsa_kernarg_size 96
  .amdhsa_user_sgpr_count 2
  .amdhsa_user_sgpr_kernarg_segment_ptr 1
  .amdhsa_system_sgpr_workgroup_id_x 1
.end_amdhsa_kernel
"""

HEADER = """; Kernarg layout (96 bytes, ptrs only, base s[0:1]):
"""
def build_file(kernels, launches):
    o = [HEADER]
    for k in launches:
        o.append(f"; @launch kernel={k.name} grid=({k.grid},1,1) block=({k.block},1,1) lds={k.lds}\n")
    o.append('.amdgcn_target "amdgcn-amd-amdhsa--gfx950"\n.text\n')
    for k in kernels:
        o.append(k.text())
    o.append('.section .rodata,"a"\n')
    for k in kernels:
        o.append(".p2align 6\n")
        o.append(k.desc())
    return "".join(o)
```

```python
from fw import *
MB = 1 << 20
WS_KVT = 0 * MB
WS_Y   = 4 * MB
WS_XA  = 8 * MB
WS_XN  = 12 * MB
WS_PQ  = 16 * MB
WS_KVP = 20 * MB
WS_O   = 24 * MB
WS_X2  = 28 * MB
SZ4 = 4 * MB

def k_prep():
    K = Kern("prep_kernel", 256, 256, 16384, vgpr=160, sgpr=48)
    K("s_cmp_ge_u32 s2, 256")
    done = K.newlabel("done")
    K(f"s_cbranch_scc1 {done}")
    K.ldptr(4, "k"); K.ldptr(6, "v"); K.ldptr(8, "shift_k"); K.ldptr(10, "ws")
    K("s_lshr_b32 s12, s2, 4")
    K("s_and_b32 s13, s2, 15")
    K("v_and_b32 v1, 7, v0")
    K("v_lshrrev_b32 v2, 3, v0")
    K("s_waitcnt lgkmcnt(0)")
    K.srd(16, 4, 0, SZ4)
    K.srd(20, 6, 0, SZ4)
    K.srd(24, 8, 0, 8192)
    K.srd(28, 10, WS_KVT, SZ4)
    K("s_lshl_b32 s14, s12, 18")
    K("s_lshl_b32 s15, s13, 7")
    K("s_add_u32 s14, s14, s15")
    K("s_sub_u32 s14, s14, 6144")
    K("v_lshlrev_b32 v3, 13, v2")
    K("v_lshl_add_u32 v3, v1, 4, v3")
    K("v_add_u32 v3, s14, v3")
    for j in range(1, 7):
        K(f"v_add_u32 v{3+j}, {2048*j}, v3")
    K("s_lshl_b32 s15, s13, 9")
    K("v_lshlrev_b32 v10, 6, v1")
    K("v_add_u32 v10, s15, v10")
    for j in range(7):
        K(f"buffer_load_dwordx4 {v(16+4*j,4)}, v{3+j}, s[16:19], 0 offen")
    for i in range(4):
        K(f"buffer_load_dwordx4 {v(44+4*i,4)}, v{6+i}, s[20:23], 0 offen")
    for i in range(4):
        K(f"buffer_load_dwordx4 {v(60+4*i,4)}, v10, s[24:27], 0 offen offset:{16*i}")
    K("v_sub_u32 v11, 31, v2")
    K("v_lshlrev_b32 v12, 1, v1")
    K("v_xor_b32 v11, v11, v12")
    K("v_lshlrev_b32 v11, 3, v11")
    K("v_lshl_add_u32 v11, v1, 11, v11")
    K("s_waitcnt vmcnt(0)")
    KU = 80
    SU = 88
    VU = 92
    AC = 96
    PK = 100
    for e in range(8):
        dw = e >> 1
        def unpack(dst, src):
            if e & 1: K(f"v_and_b32 v{dst}, 0xffff0000, v{src}")
            else:     K(f"v_lshlrev_b32 v{dst}, 16, v{src}")
        for j in range(7): unpack(KU + j, 16 + 4*j + dw)
        for i in range(4): unpack(VU + i, 44 + 4*i + dw)
        K(f"v_lshlrev_b32 v{SU+0}, 16, v{60+2*e}")
        K(f"v_and_b32 v{SU+1}, 0xffff0000, v{60+2*e}")
        K(f"v_lshlrev_b32 v{SU+2}, 16, v{60+2*e+1}")
        K(f"v_and_b32 v{SU+3}, 0xffff0000, v{60+2*e+1}")
        for i in range(4):
            K(f"v_mul_f32 v{AC+i}, v{KU+i}, v{SU+3}")
        for tap in (2, 1, 0):
            for i in range(4):
                K(f"v_fmac_f32 v{AC+i}, v{KU+3+i-tap}, v{SU+tap}")
        for i in range(4):
            K(f"v_mul_f32 v{AC+i}, v{AC+i}, v{VU+i}")
        p = PK + 2*(e & 1)
        K(f"v_cvt_pk_bf16_f32 v{p}, v{AC+3}, v{AC+2}")
        K(f"v_cvt_pk_bf16_f32 v{p+1}, v{AC+1}, v{AC+0}")
        K(f"ds_write_b64 v11, {v(p,2)} offset:{e*256}")
    K("s_waitcnt lgkmcnt(0)")
    K("s_barrier")
    K("v_lshrrev_b32 v1, 4, v0")
    K("v_and_b32 v2, 15, v0")
    K("v_lshrrev_b32 v3, 7, v0")
    K("s_lshl_b32 s14, s13, 18")
    K("s_add_u32 s15, s12, 1")
    K("s_lshl_b32 s15, s15, 8")
    K("s_sub_u32 s15, 4096, s15")
    K("s_add_u32 s14, s14, s15")
    K("v_lshlrev_b32 v4, 12, v1")
    K("v_lshl_add_u32 v4, v2, 4, v4")
    K("v_add_u32 v4, s14, v4")
    for p4 in range(4):
        K(f"v_add_u32 v5, {2*p4}, v3")
        K("v_xor_b32 v5, v5, v2")
        K("v_lshlrev_b32 v5, 4, v5")
        K("v_lshl_add_u32 v5, v1, 8, v5")
        K(f"ds_read_b128 {v(16+4*p4,4)}, v5 offset:{p4*4096}")
    for p4 in range(4):
        K(f"v_add_u32 v{6+p4}, {p4*65536}, v4")
    for p4 in range(4):
        K(f"s_waitcnt lgkmcnt({3-p4})")
        K(f"buffer_store_dwordx4 {v(16+4*p4,4)}, v{6+p4}, s[28:31], 0 offen")
    K.label(done)
    K("s_endpgm")
    return K

HE = 0
HO = 4160
UR = 8320
WP = 12928
def k_conv():
    K = Kern("conv_kernel", 256, 256, 4*WP, vgpr=224, sgpr=100)
    done = K.newlabel("done")
    K("s_cmp_ge_u32 s2, 256")
    K(f"s_cbranch_scc1 {done}")
    K.ldptr(4, "ssm_k"); K.ldptr(6, "ssm_D"); K.ldptr(10, "ws")
    K("s_and_b32 s12, s2, 7")
    K("s_lshl_b32 s12, s12, 5")
    K("s_lshr_b32 s13, s2, 3")
    K("s_add_u32 s12, s12, s13")
    K("v_lshrrev_b32 v1, 6, v0")
    K("v_and_b32 v2, 63, v0")
    K("s_nop 0")
    K("v_readfirstlane_b32 s14, v1")
    K.stamp(0)
    K("s_mov_b32 s88, s14")
    K("s_waitcnt lgkmcnt(0)")
    K.srd(16, 4, 0, SZ4)
    K.srd(20, 6, 0, 2048)
    K.srd(24, 10, WS_KVT, SZ4)
    K.srd(28, 10, WS_Y, SZ4)
    K("s_lshl_b32 s15, s12, 2")
    K("s_add_u32 s15, s15, s14")
    K("s_lshl_b32 s32, s15, 12")
    K(f"s_mul_i32 s33, s14, {WP}")
    K("v_lshlrev_b32 v3, 4, v2")
    for j in range(4):
        K(f"buffer_load_dwordx4 {v(16+4*j,4)}, v3, s[16:19], s32 offen offset:{1024*j}")
    for j in range(4):
        K(f"buffer_load_dword v{32+j}, v3, s[16:19], s32 offen offset:{1024*j+16}")
    for j in range(4):
        K(f"buffer_load_dwordx4 {v(36+4*j,4)}, v3, s[24:27], s32 offen offset:{1024*j}")
    K("s_lshl_b32 s34, s15, 1")
    K("v_mov_b32 v4, s34")
    K("buffer_load_ushort v52, v4, s[20:23], 0 offen")
    K("v_add_u32 v4, s33, v3")
    K("v_mov_b32 v56, 0\nv_mov_b32 v57, 0\nv_mov_b32 v58, 0\nv_mov_b32 v59, 0")
    K("v_cmp_gt_u32 vcc, 2, v2")
    K("s_and_saveexec_b64 s[36:37], vcc")
    K(f"ds_write_b128 v4, v[56:59] offset:{HE}")
    K(f"ds_write_b128 v4, v[56:59] offset:{HO}")
    K("s_mov_b64 exec, s[36:37]")
    K("v_cmp_gt_u32 vcc, 30, v2")
    K("s_and_saveexec_b64 s[36:37], vcc")
    K(f"ds_write_b128 v4, v[56:59] offset:{UR+4096}")
    K("s_mov_b64 exec, s[36:37]")
    K("s_waitcnt vmcnt(0)")
    K.stamp(1)
    for j in range(4):
        K(f"ds_write_b128 v4, {v(16+4*j,4)} offset:{HE+32+1024*j}")
    for j in range(4):
        K(f"ds_write_b128 v4, {v(36+4*j,4)} offset:{UR+1024*j}")
    for j in range(4):
        b = 16 + 4*j
        K(f"v_alignbit_b32 v60, v{b+1}, v{b}, 16")
        K(f"v_alignbit_b32 v61, v{b+2}, v{b+1}, 16")
        K(f"v_alignbit_b32 v62, v{b+3}, v{b+2}, 16")
        K(f"v_alignbit_b32 v63, v{32+j}, v{b+3}, 16")
        K(f"ds_write_b128 v4, v[60:63] offset:{HO+32+1024*j}")
        K("s_nop 1")
    K("v_lshlrev_b32 v60, 16, v16")
    K("v_cmp_eq_u32 vcc, 0, v2")
    K("s_and_saveexec_b64 s[36:37], vcc")
    K(f"ds_write_b32 v4, v60 offset:{HO+28}")
    K("s_mov_b64 exec, s[36:37]")
    K("v_lshlrev_b32 v52, 16, v52")
    K("v_and_b32 v5, 15, v2")
    K("v_lshrrev_b32 v6, 4, v2")
    K("v_lshrrev_b32 v7, 1, v5")
    K("v_lshl_add_u32 v7, v6, 2, v7")
    K("v_lshlrev_b32 v7, 2, v7")
    K("v_and_b32 v8, 1, v5")
    K(f"v_mov_b32 v9, {HO + 32 - 32}")
    K(f"v_mov_b32 v10, {HE + 32 - 28}")
    K("v_cmp_eq_u32 vcc, 1, v8")
    K("s_nop 1")
    K("v_cndmask_b32 v9, v9, v10, vcc")
    K("v_add_u32 v7, v7, v9")
    K("v_add_u32 v7, s33, v7")
    AR = [7, 11, 12, 13]
    for m in range(1, 4):
        K(f"v_add_u32 v{AR[m]}, {1024*m}, v7")
    K("v_lshlrev_b32 v14, 4, v6")
    K("v_lshlrev_b32 v15, 5, v5")
    K("v_sub_u32 v14, v14, v15")
    K(f"v_add_u32 v14, {UR + 4032 + 32 - 512*7}, v14")
    K("v_add_u32 v14, s33, v14")
    K("s_waitcnt lgkmcnt(0)")
    ACC = 64
    SET = [96, 160]
    def loads(c0, st):
        ins = []
        for c1 in range(8):
            o = 16*c0 + 128*(c1 & 1)
            ins.append(f"ds_read2_b32 {v(st+4*c1,2)}, v{AR[c1>>1]} offset0:{o} offset1:{o+1}")
            ins.append(f"ds_read2_b32 {v(st+4*c1+2,2)}, v{AR[c1>>1]} offset0:{o+2} offset1:{o+3}")
            dl = c1
            ins.append(f"ds_read_b128 {v(st+32+4*dl,4)}, v14 offset:{512*(7-dl)+64*c0}")
        return ins
    K.stamp(2)
    for x in loads(0, SET[0]): K(x)
    for c0 in range(8):
        st = SET[c0 & 1]
        nxt = loads(c0+1, SET[(c0+1) & 1]) if c0 < 7 else []
        K("s_waitcnt lgkmcnt(0)")
        n = 0
        for c1 in range(8):
            for g in range(c1, 8):
                cin = v(ACC+4*g, 4) if not (c0 == 0 and c1 == 0) else "0"
                K(f"v_mfma_f32_16x16x32_bf16 {v(ACC+4*g,4)}, {v(st+4*c1,4)}, {v(st+32+4*(g-c1),4)}, {cin}")
                if n < len(nxt): K(nxt[n])
                n += 1
    K.stamp(3)
    K("v_lshlrev_b32 v14, 3, v6")
    K("v_add_u32 v14, v14, v15")
    K(f"v_sub_u32 v14, {UR + 4088 - 512*7}, v14")
    K("v_add_u32 v14, s33, v14")
    for g in range(8):
        K(f"ds_read_b64 {v(96+2*g,2)}, v14 offset:{512*(7-g)}")
    K("v_lshlrev_b32 v13, 3, v6")
    K("v_add_u32 v13, v13, v15")
    K("v_add_u32 v13, s33, v13")
    K("s_waitcnt lgkmcnt(0)")
    K("s_nop 7")
    for g in range(8):
        a = ACC + 4*g
        kd = 96 + 2*g
        K(f"v_and_b32 v120, 0xffff0000, v{kd+1}")
        K(f"v_lshlrev_b32 v121, 16, v{kd+1}")
        K(f"v_and_b32 v122, 0xffff0000, v{kd}")
        K(f"v_lshlrev_b32 v123, 16, v{kd}")
        for r in range(4):
            K(f"v_mul_f32 v{120+r}, v{120+r}, v52")
        K(f"v_cvt_pk_bf16_f32 v124, v120, v121")
        K(f"v_cvt_pk_bf16_f32 v125, v122, v123")
        K(f"v_cvt_pk_bf16_f32 v126, v{a}, v{a+1}")
        K(f"v_cvt_pk_bf16_f32 v127, v{a+2}, v{a+3}")
        K("v_lshlrev_b32 v120, 16, v124\nv_and_b32 v121, 0xffff0000, v124\nv_lshlrev_b32 v122, 16, v125\nv_and_b32 v123, 0xffff0000, v125")
        K("v_lshlrev_b32 v128, 16, v126\nv_and_b32 v129, 0xffff0000, v126\nv_lshlrev_b32 v130, 16, v127\nv_and_b32 v131, 0xffff0000, v127")
        for r in range(4):
            K(f"v_add_f32 v{120+r}, v{120+r}, v{128+r}")
        K(f"v_cvt_pk_bf16_f32 v{132+2*(g&1)}, v120, v121")
        K(f"v_cvt_pk_bf16_f32 v{133+2*(g&1)}, v122, v123")
        K(f"ds_write_b64 v13, {v(132+2*(g&1),2)} offset:{512*g}")
    K("s_waitcnt lgkmcnt(0)")
    K.stamp(4)
    K("s_barrier")
    K("v_lshlrev_b32 v1, 3, v0")
    for j in range(2):
        for ch in range(4):
            K(f"ds_read_b64 {v(16+8*j+2*ch,2)}, v1 offset:{ch*WP + j*2048}")
    K("s_lshl_b32 s34, s12, 3")
    K("v_lshlrev_b32 v2, 13, v0")
    K("v_add_u32 v2, s34, v2")
    K("s_mov_b32 s35, 0x07060302")
    K("s_mov_b32 s36, 0x05040100")
    K("s_waitcnt lgkmcnt(0)")
    for j in range(2):
        b = 16 + 8*j
        for r in range(4):
            dw = r >> 1
            sel = "s35" if (r & 1) else "s36"
            o = 40 + 8*j + 2*r
            K(f"v_perm_b32 v{o}, v{b+2+dw}, v{b+0+dw}, {sel}")
            K(f"v_perm_b32 v{o+1}, v{b+6+dw}, v{b+4+dw}, {sel}")
        for r in range(4):
            o = 40 + 8*j + 2*r
            K(f"v_add_u32 v{60+4*j+r}, {j*256*4*2048 + r*2048}, v2")
        for r in range(4):
            o = 40 + 8*j + 2*r
            K(f"buffer_store_dwordx2 {v(o,2)}, v{60+4*j+r}, s[28:31], 0 offen")
    K.stamp(5)
    if Kern.STAMP:
        K("s_waitcnt vmcnt(0)")
        K.stamp(6)
    K.stamp_flush(10, 1)
    K.label(done)
    K("s_endpgm")
    return K
```

```python
import sys
from k_conv import *; from k_e import *; from k_gemm import *
Kern.STAMP = len(sys.argv) > 2 and sys.argv[2] == "stamp"
kp, kc = k_prep(), k_conv()
e1 = k_e("e1_kernel", "q", 0, WS_XA, WS_XN)
e2 = k_e("e2_kernel", "ws", WS_X2, WS_XA, WS_XN)
g1 = k_g1("g1_kernel", WS_XN)
m = k_m("m_kernel")
g2a = k_g2("g2a_kernel", WS_XA, False)
g2b = k_g2("g2b_kernel", WS_XA, True)
ks = [kp, kc, e1, e2, g1, m, g2a, g2b]
ls = [kp, kc, e1, g1, m, g2a, e2, g1, m, g2b]
open(sys.argv[1], "w").write(build_file(ks, ls))
```

```python
import sys
from fw import *
MB = 1 << 20
WS_KVT = 0; WS_YT = 4*MB; WS_XA = [8*MB, 12*MB]; WS_O = [16*MB, 20*MB]
WS_KVP = [24*MB, 26*MB]; KVP_STRIDE = 2304
WS_STQ = 30*MB; WS_STXA = [31*MB, 33*MB]; WS_STX2 = 32*MB
WS_CSP = 34*MB; WS_ROWC = 35*MB; WS_COLC = 35*MB + 65536
SZ4 = 4*MB
R_QST, R_XA0, R_O0, R_X2, R_XA1, R_O1 = range(6)
C_KVT, C_Y, C_KVP0, C_KVP1 = range(4)
CNT_PH = 4096
G1STG = 40960; G1N = 4
G2STG = 24576; G2N = 6
LDS_TOTAL = 163840
HE = 0; HO = 4160; UR = 8320; WP = 12928
KVSTAGE = 65536; CSL = 53248; QSX = 54272
XA_TB = 40960; XA_SX = 57344
O_TB = 98304
X3B = 122880; RSTAT = 139264
def MSL(w): return (w >> 1)*24576 + (w & 1)*8192

S_WS = 8; S_K = 12; S_V = 16; S_Q = 20; S_H = 24; S_WQKV = 28; S_WO = 32; S_OUT = 36; S_MISC = 40; S_DBG = 44
S_RB = 48; S_CT = 49; S_W = 50; S_RH = 51; S_CH = 52; S_LAYER = 53
S_XAOFF = 54; S_STXA = 55; S_KVPOFF = 56; S_OOFF = 57; S_ROWCNT = 58; S_COLCNT = 59
T0 = 60
XT = 224; YT = 240
WS = f"s[{S_WS}:{S_WS+3}]"
STV = 31
VM = [16, 18]; VR = [20, 22]; VCS = [17, 19, 21]
VST = [24, 25]; VTW = 26; VLIN = 27
def srd(b): return f"s[{b}:{b+3}]"

def gen(stamp=False):
    K = Kern("interleave_layers__ssm_conv_h3__linear_attn_block__prompt_kernel", 256, 512, LDS_TOTAL, vgpr=256, sgpr=100)
    bars = {"C": [], "H": []}
    cur = ["C"]
    def BAR(tag, both=False):
        if both: bars["C"].append(tag); bars["H"].append(tag)
        else: bars[cur[0]].append(tag)
        K("s_barrier")
    def ST(i):
        if stamp and cur[0] == "C":
            K("s_memrealtime s[88:89]")
            K(f"s_mul_i32 s92, s{S_LAYER}, 24")
            K(f"s_add_u32 m0, s92, {i}")
            K("s_waitcnt lgkmcnt(0)")
            K(f"v_writelane_b32 v{STV}, s88, m0")
    def STH(i):
        if stamp:
            K("s_memrealtime s[88:89]")
            K("s_waitcnt lgkmcnt(0)")
            K(f"v_writelane_b32 v{STV}, s88, {i}")
    def STC(i):
        if stamp:
            K("s_memtime s[88:89]")
            K("s_waitcnt lgkmcnt(0)")
            K(f"v_writelane_b32 v{STV}, s88, {i}")
    K("s_cmp_ge_u32 s2, 256")
    K("s_cbranch_scc1 L_done")
    K.ldptr(4, "k"); K.ldptr(6, "v")
    for (r, n) in ((60, "q"), (62, "ssm_k"), (64, "wqkv"), (66, "wo"), (68, "out"), (70, "ws"), (72, "dbg"), (74, "shift_k"), (76, "ssm_D")):
        K.ldptr(r, n)
    K("v_and_b32 v1, 63, v0")
    K("v_lshrrev_b32 v5, 6, v0")
    K("v_and_b32 v2, 31, v1")
    K("v_lshrrev_b32 v3, 5, v1")
    K(f"v_readfirstlane_b32 s{S_W}, v5")
    K("s_and_b32 s78, s2, 7\ns_lshr_b32 s79, s2, 3")
    K("s_and_b32 s80, s78, 1\ns_lshl_b32 s80, s80, 3\ns_and_b32 s81, s79, 7")
    K(f"s_add_u32 s{S_RB}, s80, s81")
    K("s_lshr_b32 s80, s78, 1\ns_lshl_b32 s80, s80, 2\ns_lshr_b32 s81, s79, 3")
    K(f"s_add_u32 s{S_CT}, s80, s81")
    K(f"s_and_b32 s{S_RH}, s{S_W}, 1")
    K(f"s_bfe_u32 s{S_CH}, s{S_W}, 0x10001")
    K(f"s_mov_b32 s{S_LAYER}, 0")
    K(f"s_lshl_b32 s78, s{S_RB}, 8")
    K(f"s_add_u32 s{S_ROWCNT}, s78, {WS_ROWC:#x}")
    K(f"s_lshl_b32 s78, s{S_CT}, 8")
    K(f"s_add_u32 s{S_COLCNT}, s78, {WS_COLC:#x}")
    K(f"s_mov_b32 s{S_XAOFF}, {WS_XA[0]:#x}")
    K(f"s_mov_b32 s{S_STXA}, {WS_STXA[0]:#x}")
    K(f"s_mov_b32 s{S_KVPOFF}, {WS_KVP[0]:#x}")
    K(f"s_mov_b32 s{S_OOFF}, {WS_O[0]:#x}")
    K("s_waitcnt lgkmcnt(0)")
    K.srd(S_K, 4, 0, SZ4); K.srd(S_V, 6, 0, SZ4); K.srd(S_MISC, 74, 0, 8192)
    K("v_and_b32 v32, 7, v0")
    K("v_lshrrev_b32 v33, 3, v0")
    K(f"s_lshl_b32 s78, s{S_RB}, 18")
    K(f"s_lshl_b32 s79, s{S_CT}, 7")
    K("s_add_u32 s78, s78, s79")
    K("s_sub_u32 s78, s78, 6144")
    K("v_lshlrev_b32 v34, 12, v33")
    K("v_lshl_add_u32 v34, v32, 4, v34")
    K("v_add_u32 v34, s78, v34")
    for j in range(1, 5): K(f"v_add_u32 v{34+j}, {2048*j}, v34")
    K(f"s_lshl_b32 s79, s{S_CT}, 9")
    K("v_lshlrev_b32 v39, 6, v32")
    K("v_add_u32 v39, s79, v39")
    for j in range(5): K(f"buffer_load_dwordx4 {v(40+4*j,4)}, v{34+j}, {srd(S_K)}, 0 offen")
    for i in range(2): K(f"buffer_load_dwordx4 {v(60+4*i,4)}, v{37+i}, {srd(S_V)}, 0 offen")
    for i in range(4): K(f"buffer_load_dwordx4 {v(68+4*i,4)}, v39, {srd(S_MISC)}, 0 offen offset:{16*i}")
    K.srd(S_Q, 60, 0, SZ4); K.srd(S_H, 62, 0, SZ4)
    K.srd(S_WQKV, 64, 0, 6*MB); K.srd(S_WO, 66, 0, 2*MB); K.srd(S_OUT, 68, 0, SZ4); K.srd(S_WS, 70, 0, 256*MB)
    K.srd(S_DBG, 72, 0, 256); K.srd(84, 76, 0, 2048)
    if stamp: K(f"v_mov_b32 v{STV}, 0")
    ST(0); STC(60)
    K(f"s_cmp_eq_u32 s{S_W}, 7")
    K("s_cbranch_scc0 L_noinit")
    K("v_cmp_gt_u32 vcc, 8, v1")
    K("s_and_saveexec_b64 s[90:91], vcc")
    K("v_lshlrev_b32 v5, 12, v1")
    K("v_mov_b32 v6, 0")
    K("v_mov_b32 v7, 1")
    K(f"s_cmp_eq_u32 s{S_CT}, 0")
    K("s_cbranch_scc0 L_init2")
    K(f"buffer_store_dword v6, v5, {WS}, s{S_ROWCNT} offen sc1")
    K("s_waitcnt vmcnt(0)")
    K(f"s_lshl_b32 s{T0}, s{S_RB}, 2")
    K(f"v_mov_b32 v8, s{T0}")
    K(f"buffer_store_dword v7, v8, {srd(S_DBG)}, 0 offen sc1")
    K.label("L_init2")
    K(f"s_cmp_eq_u32 s{S_RB}, 0")
    K("s_cbranch_scc0 L_init3")
    K(f"buffer_store_dword v6, v5, {WS}, s{S_COLCNT} offen sc1")
    K("s_waitcnt vmcnt(0)")
    K(f"s_lshl_b32 s{T0}, s{S_CT}, 2")
    K(f"s_add_u32 s{T0}, s{T0}, 64")
    K(f"v_mov_b32 v8, s{T0}")
    K(f"buffer_store_dword v7, v8, {srd(S_DBG)}, 0 offen sc1")
    K.label("L_init3")
    K("s_mov_b64 exec, s[90:91]")
    K.label("L_noinit")
    K("v_lshrrev_b32 v5, 3, v1")
    K("v_and_b32 v6, 7, v1")
    K("v_lshrrev_b32 v7, 4, v1")
    K(f"s_lshl_b32 s{T0}, s{S_RB}, 18")
    K(f"s_lshl_b32 s{T0+1}, s{S_W}, 15")
    K(f"s_add_u32 s{T0}, s{T0}, s{T0+1}")
    K(f"s_lshl_b32 s{T0+1}, s{S_CT}, 7")
    K(f"s_add_u32 s{T0}, s{T0}, s{T0+1}")
    for i in range(2):
        K(f"v_xor_b32 v8, {4*i}, v7")
        K("v_xor_b32 v8, v8, v6")
        K("v_lshlrev_b32 v8, 4, v8")
        K(f"v_add_u32 v9, {8*i}, v5")
        K("v_lshl_add_u32 v8, v9, 11, v8")
        K(f"v_add_u32 v{VST[i]}, s{T0}, v8")
    K(f"s_lshl_b32 s{T0}, s{S_W}, 11")
    K(f"v_lshlrev_b32 v{VLIN}, 4, v1")
    K(f"v_add_u32 v{VLIN}, s{T0}, v{VLIN}")
    K("v_bfe_u32 v8, v2, 1, 3")
    K(f"s_lshl_b32 s{T0}, s{S_CH}, 2")
    K(f"v_add_u32 v9, s{T0}, v3")
    K("v_xor_b32 v8, v8, v9")
    K("v_lshlrev_b32 v8, 4, v8")
    K("v_lshl_add_u32 v8, v2, 7, v8")
    K(f"s_lshl_b32 s{T0}, s{S_RH}, 13")
    K(f"v_add_u32 v{VTW}, s{T0}, v8")
    K("v_sub_u32 v5, 63, v33")
    K("v_lshlrev_b32 v6, 2, v32")
    K("v_xor_b32 v5, v5, v6")
    K("v_lshlrev_b32 v5, 2, v5")
    K("v_lshl_add_u32 v5, v32, 11, v5")
    K(f"v_add_u32 v5, {KVSTAGE}, v5")
    K("s_waitcnt vmcnt(0)")
    K(f"s_cmp_ge_u32 s{S_W}, 4")
    K("s_cbranch_scc1 L_nohl")
    HR = 128
    K("v_lshlrev_b32 v4, 11, v2")
    K("v_lshl_add_u32 v4, v3, 4, v4")
    K(f"s_lshl_b32 s{T0}, s{S_RB}, 18")
    K(f"s_lshl_b32 s{T0+1}, s{S_RH}, 17")
    K(f"s_add_u32 s{T0}, s{T0}, s{T0+1}")
    K(f"s_lshl_b32 s{T0+1}, s{S_CT}, 7")
    K(f"s_add_u32 s{T0}, s{T0}, s{T0+1}")
    K(f"s_lshl_b32 s{T0+1}, s{S_CH}, 6")
    K(f"s_add_u32 s{T0}, s{T0}, s{T0+1}")
    K(f"s_add_u32 s{T0+1}, s{T0}, 0x10000")
    SD, SDO, SLB = T0+10, T0+11, T0+12
    K(f"s_lshl_b32 s{SD}, s{S_CT}, 6")
    K(f"s_lshl_b32 s{SDO}, s{S_RB}, 2")
    K(f"s_add_u32 s{SD}, s{SD}, s{SDO}")
    K(f"s_add_u32 s{SD}, s{SD}, s{S_W}")
    K(f"s_lshl_b32 s{SDO}, s{SD}, 12")
    K(f"s_mul_i32 s{SLB}, s{S_W}, {WP}")
    K("v_lshlrev_b32 v149, 4, v1")
    for j in range(4):
        K(f"buffer_load_dwordx4 {v(HR+4*j,4)}, v149, {srd(S_H)}, s{SDO} offen offset:{1024*j}")
    for j in range(4):
        K(f"buffer_load_dword v{HR+16+j}, v149, {srd(S_H)}, s{SDO} offen offset:{1024*j+16}")
    K(f"s_lshl_b32 s{T0+5}, s{SD}, 1")
    K(f"v_mov_b32 v150, s{T0+5}")
    K("buffer_load_ushort v148, v150, s[84:87], 0 offen")
    for rt in range(2):
        for qq in range(2):
            K(f"buffer_load_dwordx4 {v(XT+8*rt+4*qq,4)}, v4, {srd(S_Q)}, s{T0+rt} offen offset:{32*qq}")
    K.label("L_nohl")
    KU, SU, VU, AC = 96, 102, 106, 108
    for e in range(8):
        dw = e >> 1
        b = 16*(e & 1)
        def unpack(dst, src):
            if e & 1: K(f"v_and_b32 v{dst}, 0xffff0000, v{src}")
            else:     K(f"v_lshlrev_b32 v{dst}, 16, v{src}")
        for j in range(5): unpack(KU + b + j, 40 + 4*j + dw)
        for i in range(2): unpack(VU + b + i, 60 + 4*i + dw)
        K(f"v_lshlrev_b32 v{SU+b+0}, 16, v{68+2*e}")
        K(f"v_and_b32 v{SU+b+1}, 0xffff0000, v{68+2*e}")
        K(f"v_lshlrev_b32 v{SU+b+2}, 16, v{68+2*e+1}")
        K(f"v_and_b32 v{SU+b+3}, 0xffff0000, v{68+2*e+1}")
        for i in range(2): K(f"v_mul_f32 v{AC+b+i}, v{KU+b+i}, v{SU+b+3}")
        for tap in (2, 1, 0):
            for i in range(2): K(f"v_fmac_f32 v{AC+b+i}, v{KU+b+3+i-tap}, v{SU+b+tap}")
        for i in range(2): K(f"v_mul_f32 v{AC+b+i}, v{AC+b+i}, v{VU+b+i}")
        K(f"v_cvt_pk_bf16_f32 v{AC+b+2}, v{AC+b+1}, v{AC+b+0}")
        K(f"ds_write_b32 v5, v{AC+b+2} offset:{e*256}")
    K("s_waitcnt lgkmcnt(0)")
    BAR("S0", both=True)
    K("v_lshrrev_b32 v6, 4, v1")
    K("v_and_b32 v7, 15, v1")
    K(f"s_lshl_b32 s{T0}, s{S_W}, 3")
    K(f"v_add_u32 v6, s{T0}, v6")
    K(f"v_mov_b32 v8, s{S_W}")
    K("v_xor_b32 v8, v8, v7")
    K("v_lshlrev_b32 v8, 4, v8")
    K("v_lshl_add_u32 v8, v6, 8, v8")
    K(f"v_add_u32 v8, {KVSTAGE}, v8")
    K("ds_read_b128 v[40:43], v8")
    K("ds_read_b128 v[44:47], v8 offset:1024")
    K(f"s_lshl_b32 s{T0+1}, s{S_CT}, 18")
    K(f"s_add_u32 s{T0+2}, s{S_RB}, 1")
    K(f"s_lshl_b32 s{T0+2}, s{T0+2}, 8")
    K(f"s_sub_u32 s{T0+2}, 4096, s{T0+2}")
    K(f"s_add_u32 s{T0+1}, s{T0+1}, s{T0+2}")
    K(f"s_add_u32 s{T0+2}, s{T0+1}, 16384")
    K("v_lshlrev_b32 v9, 12, v6")
    K("v_lshl_add_u32 v9, v7, 4, v9")
    K("s_waitcnt lgkmcnt(1)")
    K(f"buffer_store_dwordx4 v[40:43], v9, {WS}, s{T0+1} offen sc1")
    K("s_waitcnt lgkmcnt(0)")
    K(f"buffer_store_dwordx4 v[44:47], v9, {WS}, s{T0+2} offen sc1")
    K(f"s_cmp_ge_u32 s{S_W}, 4")
    K("s_cbranch_scc1 L_helper")

    def tile_write(TB, regs):
        K(f"v_add_u32 v5, {TB}, v{VTW}")
        K("v_xor_b32 v6, 32, v5")
        for rt in range(2):
            for qq in range(2):
                K(f"ds_write_b128 v{5+qq}, {v(regs+8*rt+4*qq,4)} offset:{rt*4096}")
    def tile_store(TB, sr, soff, sc="sc1"):
        K(f"v_add_u32 v5, {TB}, v{VLIN}")
        K("ds_read_b128 v[32:35], v5")
        K("ds_read_b128 v[36:39], v5 offset:1024")
        K("s_waitcnt lgkmcnt(1)")
        K(f"buffer_store_dwordx4 v[32:35], v{VST[0]}, {sr}, {soff} offen {sc}")
        K("s_waitcnt lgkmcnt(0)")
        K(f"buffer_store_dwordx4 v[36:39], v{VST[1]}, {sr}, {soff} offen {sc}")
    def stats_pre(S2, Q2, SX):
        T = 40
        for rt in range(2):
            K(f"v_add_f32 v{T+2*rt}, v{S2[rt]}, v{S2[rt]+1}")
            K(f"v_add_f32 v{T+2*rt+1}, v{Q2[rt]}, v{Q2[rt]+1}")
        for j in range(4): K(f"v_mov_b32 v{T+4+j}, v{T+j}")
        K("s_nop 1")
        for j in range(4): K(f"v_permlane32_swap_b32 v{T+4+j}, v{T+j}")
        K("v_cmp_eq_u32 vcc, 1, v3")
        for j in range(4): K(f"v_add_f32 v{T+j}, v{T+j}, v{T+4+j}")
        K(f"v_cndmask_b32 v{T+8}, v{T}, v{T+2}, vcc")
        K(f"v_cndmask_b32 v{T+9}, v{T+1}, v{T+3}, vcc")
        K(f"s_lshl_b32 s{T0}, s{S_RH}, 9")
        K(f"s_add_u32 s{T0}, s{T0}, {SX}")
        K("v_lshlrev_b32 v7, 3, v1")
        K(f"v_add_u32 v{T+10}, s{T0}, v7")
        l = K.newlabel("sp")
        K(f"s_cmp_eq_u32 s{S_CH}, 0")
        K(f"s_cbranch_scc1 {l}")
        K(f"ds_write_b64 v{T+10}, v[{T+8}:{T+9}]")
        K.label(l)
    def stats_post(stoff):
        T = 40
        l = K.newlabel("sq")
        K(f"s_cmp_eq_u32 s{S_CH}, 1")
        K(f"s_cbranch_scc1 {l}")
        K(f"ds_read_b64 v[{T+12}:{T+13}], v{T+10}")
        K(f"s_lshl_b32 s{T0}, s{S_RB}, 4")
        K(f"s_add_u32 s{T0}, s{T0}, s{S_CT}")
        K(f"s_lshl_b32 s{T0}, s{T0}, 10")
        K(f"s_lshl_b32 s{T0+1}, s{S_RH}, 9")
        K(f"s_add_u32 s{T0}, s{T0}, s{T0+1}")
        K(f"s_add_u32 s{T0}, s{T0}, {stoff}")
        K("v_lshlrev_b32 v7, 3, v1")
        K("s_waitcnt lgkmcnt(0)")
        K(f"v_pk_add_f32 v[{T+8}:{T+9}], v[{T+8}:{T+9}], v[{T+12}:{T+13}]")
        K(f"buffer_store_dwordx2 v[{T+8}:{T+9}], v7, {WS}, s{T0} offen sc1")
        K.label(l)
    def stats_load(stoff, R):
        K(f"s_lshl_b32 s{T0}, s{S_RB}, 14")
        K(f"s_lshl_b32 s{T0+1}, s{S_RH}, 9")
        K(f"s_add_u32 s{T0}, s{T0}, s{T0+1}")
        K(f"s_add_u32 s{T0}, s{T0}, {stoff}")
        K("v_lshlrev_b32 v5, 13, v3")
        K("v_lshl_add_u32 v5, v2, 3, v5")
        for j in range(8):
            for rt in range(2):
                K(f"buffer_load_dwordx2 v[{R+16*rt+2*j}:{R+16*rt+2*j+1}], v5, {WS}, s{T0} offen offset:{rt*256} sc1")
            if j < 7: K(f"s_add_u32 s{T0}, s{T0}, 1024")
    def stats_reduce(R):
        for j in range(1, 8):
            for rt in range(2):
                b = R + 16*rt
                K(f"v_pk_add_f32 v[{b}:{b+1}], v[{b}:{b+1}], v[{b+2*j}:{b+2*j+1}]")
        for rt in range(2):
            b = R + 16*rt
            K(f"v_mov_b32 v{b+2}, v{b}")
            K(f"v_mov_b32 v{b+3}, v{b+1}")
        K("s_nop 1")
        for rt in range(2):
            b = R + 16*rt
            K(f"v_permlane32_swap_b32 v{b+2}, v{b}")
            K(f"v_permlane32_swap_b32 v{b+3}, v{b+1}")
        K(f"s_mov_b32 s{T0}, 0x3a800000")
        K(f"s_mov_b32 s{T0+1}, 0x3727c5ac")
        for rt in range(2):
            b = R + 16*rt
            K(f"v_pk_add_f32 v[{b}:{b+1}], v[{b}:{b+1}], v[{b+2}:{b+3}]")
        for rt in range(2):
            b = R + 16*rt
            K(f"v_mul_f32 v{VM[rt]}, s{T0}, v{b}")
            K(f"v_mul_f32 v{b+1}, s{T0}, v{b+1}")
        for rt in range(2):
            b = R + 16*rt
            K(f"v_fma_f32 v{b+1}, -v{VM[rt]}, v{VM[rt]}, v{b+1}")
            K(f"v_max_f32 v{b+1}, 0, v{b+1}")
            K(f"v_add_f32 v{b+1}, s{T0+1}, v{b+1}")
            K(f"v_rsq_f32 v{VR[rt]}, v{b+1}")
        K("s_nop 0")
    S2 = [48, 52]; Q2 = [50, 54]
    def acc_stats(first, rt, P):
        if first:
            K(f"v_pk_mul_f32 v[{Q2[rt]}:{Q2[rt]+1}], v[{P}:{P+1}], v[{P}:{P+1}]")
            K(f"v_mov_b32 v{S2[rt]}, v{P}")
            K(f"v_mov_b32 v{S2[rt]+1}, v{P+1}")
        else:
            K(f"v_pk_fma_f32 v[{Q2[rt]}:{Q2[rt]+1}], v[{P}:{P+1}], v[{P}:{P+1}], v[{Q2[rt]}:{Q2[rt]+1}]")
            K(f"v_pk_add_f32 v[{S2[rt]}:{S2[rt]+1}], v[{S2[rt]}:{S2[rt]+1}], v[{P}:{P+1}]")
    def e_phase():
        n = 0
        for rt in range(2):
            for i in range(8):
                t = 56 + 6*(n % 3); n += 1
                x = XT + 8*rt + i; y = YT + 8*rt + i
                K(f"v_lshlrev_b32 v{t}, 16, v{x}")
                K(f"v_and_b32 v{t+1}, 0xffff0000, v{x}")
                K(f"v_lshlrev_b32 v{t+2}, 16, v{y}")
                K(f"v_and_b32 v{t+3}, 0xffff0000, v{y}")
                K(f"v_pk_add_f32 v[{t+4}:{t+5}], v[{t}:{t+1}], v[{VM[rt]}:{VM[rt]+1}] op_sel_hi:[1,0] neg_lo:[0,1] neg_hi:[0,1]")
                K(f"v_pk_mul_f32 v[{t+4}:{t+5}], v[{t+4}:{t+5}], v[{VR[rt]}:{VR[rt]+1}] op_sel_hi:[1,0]")
                K(f"v_pk_fma_f32 v[{t}:{t+1}], v[{t+4}:{t+5}], v[{t+2}:{t+3}], v[{t}:{t+1}]")
                acc_stats(i == 0, rt, t)
                K(f"v_cvt_pk_bf16_f32 v{x}, v{t}, v{t+1}")
    def baddr(dst, base):
        K("v_bfe_u32 v13, v1, 4, 1")
        K("v_bfe_u32 v14, v1, 2, 2")
        K("v_and_b32 v15, 3, v1")
        K(f"v_lshlrev_b32 v{dst}, 1, v13")
        K("v_lshrrev_b32 v13, 1, v15")
        K(f"v_add_u32 v{dst}, v{dst}, v13")
        K(f"s_lshl_b32 s{T0}, s{S_CH}, 2")
        K(f"v_add_u32 v{dst}, s{T0}, v{dst}")
        K("v_bfe_u32 v13, v14, 1, 1")
        K("v_lshlrev_b32 v13, 2, v13")
        K(f"v_xor_b32 v{dst}, v{dst}, v13")
        K(f"v_lshlrev_b32 v{dst}, 4, v{dst}")
        K("v_and_b32 v13, 1, v15")
        K(f"v_lshl_add_u32 v{dst}, v13, 3, v{dst}")
        K("v_lshl_add_u32 v13, v3, 3, v14")
        K(f"v_lshl_add_u32 v{dst}, v13, 7, v{dst}")
        K(f"v_add_u32 v{dst}, {base}, v{dst}")
    def aaddr(base):
        K("v_bfe_u32 v8, v2, 1, 3")
        K("v_xor_b32 v8, v8, v3")
        K("v_lshlrev_b32 v8, 4, v8")
        K("v_lshl_add_u32 v8, v2, 7, v8")
        K(f"s_lshl_b32 s{T0}, s{S_RH}, 13")
        K(f"s_add_u32 s{T0}, s{T0}, {base}")
        K(f"v_add_u32 v8, s{T0}, v8")
        for ks in range(1, 4): K(f"v_xor_b32 v{8+ks}, {ks<<5}, v8")
    def m_load_sum():
        K(f"s_lshl_b32 s{T0}, s{S_CT}, 1")
        K(f"s_add_u32 s{T0}, s{T0}, s{S_CH}")
        K(f"s_lshl_b32 s{T0}, s{T0}, 4")
        K(f"s_lshr_b32 s{T0+1}, s{S_W}, 2")
        K(f"s_lshl_b32 s{T0+1}, s{T0+1}, 1")
        K(f"s_add_u32 s{T0+1}, s{T0+1}, s{S_RH}")
        K(f"s_lshl_b32 s{T0+1}, s{T0+1}, 2")
        K(f"s_add_u32 s{T0}, s{T0}, s{T0+1}")
        K(f"s_mul_i32 s{T0}, s{T0}, {KVP_STRIDE}")
        K(f"s_add_u32 s{T0}, s{T0}, s{S_KVPOFF}")
        K("v_lshlrev_b32 v6, 4, v1")
        K("v_lshlrev_b32 v7, 2, v2")
        K("v_add_u32 v7, 2048, v7")
        T = 128; Z = 48
        for p in range(4):
            for h in range(2):
                K(f"buffer_load_dwordx4 {v(T+8*p+4*h,4)}, v6, {WS}, s{T0} offen offset:{h*1024} sc1")
            K(f"buffer_load_dword v{Z+p}, v7, {WS}, s{T0} offen sc1")
            if p < 3: K(f"s_add_u32 s{T0}, s{T0}, {KVP_STRIDE}")
        K(f"s_lshr_b32 s{T0+3}, s{S_W}, 1")
        K(f"s_mul_i32 s{T0+3}, s{T0+3}, 24576")
        K(f"s_lshl_b32 s{T0+4}, s{S_RH}, 13")
        K(f"s_add_u32 s{T0+3}, s{T0+3}, s{T0+4}")
        K(f"v_add_u32 v8, s{T0+3}, v6")
        K("v_lshlrev_b32 v9, 2, v1")
        K(f"v_add_u32 v9, s{T0+3}, v9")
        for p in range(4):
            K(f"s_waitcnt vmcnt({3*(3-p)})")
            for i in range(8):
                r = T + 8*p + i
                if p == 0:
                    K(f"v_lshlrev_b32 v{32+2*i}, 16, v{r}")
                    K(f"v_and_b32 v{33+2*i}, 0xffff0000, v{r}")
                else:
                    t = 52 + 2*(i & 1)
                    K(f"v_lshlrev_b32 v{t}, 16, v{r}")
                    K(f"v_and_b32 v{t+1}, 0xffff0000, v{r}")
                    K(f"v_pk_add_f32 v[{32+2*i}:{33+2*i}], v[{32+2*i}:{33+2*i}], v[{t}:{t+1}]")
        for p in range(1, 4): K(f"v_add_f32 v{Z}, v{Z}, v{Z+p}")
        for qd in range(4): K(f"ds_write_b128 v8, {v(32+4*qd,4)} offset:{qd*1024}")
        K(f"ds_write_b32 v9, v{Z} offset:4096")
        K("s_waitcnt lgkmcnt(0)")

    cur[0] = "C"
    K("s_waitcnt vmcnt(0)")
    ST(1)
    BAR("A0")
    SD, SDO, SLB = T0+10, T0+11, T0+12
    K("v_lshlrev_b32 v6, 4, v1")
    K(f"v_add_u32 v7, s{SLB}, v6")
    K("v_mov_b32 v88, 0\nv_mov_b32 v89, 0\nv_mov_b32 v90, 0\nv_mov_b32 v91, 0")
    K("v_cmp_gt_u32 vcc, 2, v1")
    K("s_and_saveexec_b64 s[90:91], vcc")
    K(f"ds_write_b128 v7, v[88:91] offset:{HE}")
    K(f"ds_write_b128 v7, v[88:91] offset:{HO}")
    K("s_mov_b64 exec, s[90:91]")
    K("v_cmp_gt_u32 vcc, 30, v1")
    K("s_and_saveexec_b64 s[90:91], vcc")
    K(f"ds_write_b128 v7, v[88:91] offset:{UR+4096}")
    K("s_mov_b64 exec, s[90:91]")
    for j in range(4): K(f"ds_write_b128 v7, {v(HR+4*j,4)} offset:{HE+32+1024*j}")
    for j in range(4):
        b = HR + 4*j; o = 92 + 4*(j & 1)
        K(f"v_alignbit_b32 v{o}, v{b+1}, v{b}, 16")
        K(f"v_alignbit_b32 v{o+1}, v{b+2}, v{b+1}, 16")
        K(f"v_alignbit_b32 v{o+2}, v{b+3}, v{b+2}, 16")
        K(f"v_alignbit_b32 v{o+3}, v{HR+16+j}, v{b+3}, 16")
        K(f"ds_write_b128 v7, {v(o,4)} offset:{HO+32+1024*j}")
    K(f"v_lshlrev_b32 v88, 16, v{HR}")
    K("v_cmp_eq_u32 vcc, 0, v1")
    K("s_and_saveexec_b64 s[90:91], vcc")
    K(f"ds_write_b32 v7, v88 offset:{HO+28}")
    K("s_mov_b64 exec, s[90:91]")
    K("v_lshlrev_b32 v30, 16, v148")
    BAR("B0")
    ST(2); STC(52)
    for j in range(4):
        K(f"buffer_load_dwordx4 {v(64+4*j,4)}, v6, {WS}, s{SDO} offen offset:{1024*j} sc1")
    K("v_and_b32 v5, 15, v1")
    K("v_lshrrev_b32 v13, 4, v1")
    K("v_lshrrev_b32 v8, 1, v5")
    K("v_lshl_add_u32 v8, v13, 2, v8")
    K("v_lshlrev_b32 v8, 2, v8")
    K("v_and_b32 v9, 1, v5")
    K(f"v_mov_b32 v10, {HO}")
    K(f"v_mov_b32 v11, {HE + 4}")
    K("v_cmp_eq_u32 vcc, 1, v9")
    K("s_nop 1")
    K("v_cndmask_b32 v10, v10, v11, vcc")
    K("v_add_u32 v8, v8, v10")
    K(f"v_add_u32 v8, s{SLB}, v8")
    AR = [8, 9, 10, 11]
    for m in range(1, 4): K(f"v_add_u32 v{AR[m]}, {1024*m}, v8")
    K("v_lshlrev_b32 v12, 4, v13")
    K("v_lshlrev_b32 v14, 5, v5")
    K("v_sub_u32 v12, v12, v14")
    K(f"v_add_u32 v12, {UR + 4032 + 32 - 512*7}, v12")
    K(f"v_add_u32 v12, s{SLB}, v12")
    CACC = 32
    K(f"v_add_u32 v7, s{SLB}, v6")
    K("s_waitcnt vmcnt(0)")
    for j in range(4): K(f"ds_write_b128 v7, {v(64+4*j,4)} offset:{UR+1024*j}")
    for i in range(32): K(f"v_mov_b32 v{CACC+i}, 0")
    K("s_waitcnt lgkmcnt(0)")
    SET = [64, 128]
    def cloads(c0, st):
        ins = []
        for c1 in range(8):
            o = 16*c0 + 128*(c1 & 1)
            ins.append(f"ds_read_b128 {v(st+32+4*c1,4)}, v12 offset:{512*(7-c1)+64*c0}")
            ins.append(f"ds_read2_b32 {v(st+4*c1,2)}, v{AR[c1>>1]} offset0:{o} offset1:{o+1}")
            ins.append(f"ds_read2_b32 {v(st+4*c1+2,2)}, v{AR[c1>>1]} offset0:{o+2} offset1:{o+3}")
        return ins
    for x in cloads(0, SET[0]): K(x)
    K(f"s_mov_b32 s{T0+5}, 0")
    K.label("L_conv")
    for half in range(2):
        st = SET[half]
        nxt = cloads(half+1, SET[half ^ 1])
        K("s_waitcnt lgkmcnt(0)")
        n = 0
        for c1 in range(8):
            for g in range(c1, 8):
                K(f"v_mfma_f32_16x16x32_bf16 {v(CACC+4*g,4)}, {v(st+4*c1,4)}, {v(st+32+4*(g-c1),4)}, {v(CACC+4*g,4)}")
                if n < len(nxt): K(nxt[n])
                n += 1
    for r in AR + [12]: K(f"v_add_u32 v{r}, 128, v{r}")
    K(f"s_add_u32 s{T0+5}, s{T0+5}, 1")
    K(f"s_cmp_lt_u32 s{T0+5}, 4")
    K("s_cbranch_scc1 L_conv")
    K("s_waitcnt lgkmcnt(0)")
    ST(3); STC(53)
    K("v_lshlrev_b32 v12, 3, v13")
    K("v_add_u32 v12, v12, v14")
    K(f"v_sub_u32 v8, {UR + 4088 - 512*7}, v12")
    K(f"v_add_u32 v8, s{SLB}, v8")
    for g in range(8): K(f"ds_read_b64 {v(64+2*g,2)}, v8 offset:{512*(7-g)}")
    K(f"s_add_u32 s{T0+5}, s{SDO}, {WS_YT:#x}")
    K(f"v_add_u32 v13, s{SLB}, v12")
    K("s_waitcnt lgkmcnt(0)")
    for g in range(8):
        a = CACC + 4*g; kd = 64 + 2*g; b = 96 + 16*(g & 1)
        K(f"v_and_b32 v{b}, 0xffff0000, v{kd+1}")
        K(f"v_lshlrev_b32 v{b+1}, 16, v{kd+1}")
        K(f"v_and_b32 v{b+2}, 0xffff0000, v{kd}")
        K(f"v_lshlrev_b32 v{b+3}, 16, v{kd}")
        K(f"v_pk_fma_f32 v[{b}:{b+1}], v[{b}:{b+1}], v[30:31], v[{a}:{a+1}] op_sel_hi:[1,0,1]")
        K(f"v_pk_fma_f32 v[{b+2}:{b+3}], v[{b+2}:{b+3}], v[30:31], v[{a+2}:{a+3}] op_sel_hi:[1,0,1]")
        K(f"v_cvt_pk_bf16_f32 v{b+12}, v{b}, v{b+1}\nv_cvt_pk_bf16_f32 v{b+13}, v{b+2}, v{b+3}")
        K(f"ds_write_b64 v13, {v(b+12,2)} offset:{512*g}")
    K("v_lshlrev_b32 v6, 4, v1")
    K(f"v_add_u32 v7, s{SLB}, v6")
    K("s_waitcnt lgkmcnt(0)")
    for j in range(4): K(f"ds_read_b128 {v(64+4*j,4)}, v7 offset:{1024*j}")
    for j in range(4):
        K(f"s_waitcnt lgkmcnt({3-j})")
        K(f"buffer_store_dwordx4 {v(64+4*j,4)}, v6, {WS}, s{T0+5} offen offset:{1024*j} sc1")
    ST(4)
    K("s_waitcnt vmcnt(0)")
    BAR("A1"); BAR("B1")
    ST(5)
    stats_load(f"{WS_STQ:#x}", 64)
    K(f"s_mul_i32 s{T0}, s{S_CT}, {16*768}")
    K(f"s_add_u32 s{T0}, s{T0}, {WS_CSP:#x}")
    K(f"s_lshl_b32 s{T0+1}, s{S_CH}, 7")
    K(f"s_add_u32 s{T0}, s{T0}, s{T0+1}")
    K("v_lshlrev_b32 v5, 2, v2")
    K("v_mul_u32_u24 v6, 6144, v3")
    K("v_add_u32 v5, v5, v6")
    CS = 96
    for j in range(8):
        for sl in range(3):
            K(f"buffer_load_dword v{CS+3*j+sl}, v5, {WS}, s{T0} offen offset:{sl*256} sc1")
        if j < 7: K(f"s_add_u32 s{T0}, s{T0}, 768")
    BAR("C1")
    K("v_bfe_u32 v5, v1, 2, 2")
    K("v_lshl_add_u32 v5, v3, 3, v5")
    K("v_lshlrev_b32 v5, 8, v5")
    K("v_bfe_u32 v6, v1, 4, 1")
    K("v_lshl_add_u32 v5, v6, 5, v5")
    K("v_and_b32 v6, 3, v1")
    K("v_lshl_add_u32 v5, v6, 3, v5")
    K(f"s_lshl_b32 s{T0}, s{S_CH}, 13")
    K(f"s_lshl_b32 s{T0+1}, s{S_RH}, 7")
    K(f"s_add_u32 s{T0}, s{T0}, s{T0+1}")
    K(f"v_add_u32 v5, s{T0}, v5")
    for rt in range(2):
        for qq in range(2):
            for t in range(2):
                K(f"ds_read_b64_tr_b16 {v(YT+8*rt+4*qq+2*t,2)}, v5 offset:{(16*qq+4*t)*256 + rt*64}")
    K("s_waitcnt vmcnt(0)")
    stats_reduce(64)
    for sl in range(3):
        for j in range(1, 8): K(f"v_add_f32 v{CS+sl}, v{CS+sl}, v{CS+3*j+sl}")
    for sl in range(3): K(f"v_mov_b32 v{CS+4+sl}, v{CS+sl}")
    K("s_nop 1")
    for sl in range(3): K(f"v_permlane32_swap_b32 v{CS+4+sl}, v{CS+sl}")
    K("s_nop 1")
    for sl in range(3): K(f"v_add_f32 v{VCS[sl]}, v{CS+sl}, v{CS+4+sl}")
    K("s_waitcnt lgkmcnt(0)")
    K.label("L_etail")
    e_phase()
    tile_write(XA_TB, XT)
    stats_pre(S2, Q2, XA_SX)
    K("s_waitcnt lgkmcnt(0)")
    BAR("S2")
    tile_store(XA_TB, WS, f"s{S_XAOFF}")
    stats_post(f"s{S_STXA}")
    ST(6)
    aaddr(2*G1STG)
    AA = [8, 9, 10, 11]; BA = 12
    baddr(BA, 2*G1STG + 16384)
    ACC = 128; FR = [32, 52]
    for i in range(96): K(f"v_mov_b32 v{ACC+i}, 0")
    K("s_waitcnt vmcnt(0)")
    BAR("A2"); BAR("B2")
    ST(7)
    stats_load(f"s{S_STXA}", 72)
    def reads(st_regs, ks):
        r = []
        for rt in range(2): r.append(f"ds_read_b128 {v(st_regs+4*rt,4)}, v{AA[ks]} offset:{rt*4096}")
        for sl in range(3):
            for t in range(2):
                r.append(f"ds_read_b64_tr_b16 {v(st_regs+8+4*sl+2*t,2)}, v{BA} offset:{sl*8192+ks*2048+t*512}")
        return r
    def mfmas(st_regs):
        m = []
        for rt in range(2):
            A = v(st_regs+4*rt, 4)
            for sl in range(3):
                B = v(st_regs+8+4*sl, 4); acc = v(ACC + 16*(2*sl+rt), 16)
                if sl == 0: m.append(f"v_mfma_f32_32x32x16_bf16 {acc}, {B}, {A}, {acc}")
                else:       m.append(f"v_mfma_f32_32x32x16_bf16 {acc}, {A}, {B}, {acc}")
        return m
    def interleave(ms, rs):
        return [ms[0]] + rs[:2] + [ms[1]] + rs[2:4] + [ms[2]] + rs[4:6] + [ms[3]] + rs[6:] + ms[4:]
    K(f"s_mov_b32 s{T0+2}, {G1STG}")
    K(f"s_mov_b32 s{T0+3}, 0")
    K(f"s_mov_b32 s{T0+4}, 2")
    BAR("G1.0")
    ST(8); STC(50)
    for x in reads(FR[0], 0): K(x)
    K.label("L_g1loop")
    for ks in range(4):
        c_ = FR[ks & 1]; n_ = FR[(ks+1) & 1]
        if ks == 3:
            K(f"s_add_u32 s{T0+4}, s{T0+4}, 1")
            K(f"s_cmp_eq_u32 s{T0+4}, {G1N}")
            K(f"s_cselect_b32 s{T0+5}, {(-(G1N-1)*G1STG) & 0xffffffff:#x}, s{T0+2}")
            K(f"s_cselect_b32 s{T0+4}, 0, s{T0+4}")
            K(f"s_add_u32 s{T0+3}, s{T0+3}, 1")
            K(f"s_cmp_eq_u32 s{T0+3}, 16")
        K("s_waitcnt lgkmcnt(0)")
        if ks < 3:
            for x in interleave(mfmas(c_), reads(n_, ks+1)): K(x)
        else:
            K("s_cbranch_scc1 L_g1last")
            for r in AA + [BA]: K(f"v_add_u32 v{r}, s{T0+5}, v{r}")
            K("s_barrier")
            for x in interleave(mfmas(c_), reads(n_, 0)): K(x)
            K("s_branch L_g1loop")
            K.label("L_g1last")
            for x in mfmas(c_): K(x)
    bars["C"].append("G1.loop15")
    ST(9); STC(51)
    K("s_waitcnt vmcnt(0)")
    stats_reduce(72)
    def split(x, hi, lo):
        K(f"v_and_b32 v{hi}, 0xffff0000, v{x}")
        K(f"v_sub_f32 v{lo}, v{x}, v{hi}")
    K("v_cmp_eq_u32 vcc, 0, v3")
    for rt in range(2):
        split(VM[rt], 32, 33)
        o = 40 + 4*rt
        K("v_lshrrev_b32 v34, 16, v32")
        K(f"v_or_b32 v{o}, v34, v32")
        K(f"v_cvt_pk_bf16_f32 v{o+1}, v33, v33")
        K(f"v_and_b32 v{o+1}, 0xffff, v{o+1}")
        K(f"v_cndmask_b32 v{o}, 0, v{o}, vcc")
        K(f"v_cndmask_b32 v{o+1}, 0, v{o+1}, vcc")
        K(f"v_mov_b32 v{o+2}, 0\nv_mov_b32 v{o+3}, 0")
    for sl in range(3):
        K(f"v_sub_f32 v35, 0, v{VCS[sl]}")
        split(35, 32, 33)
        o = 48 + 4*sl
        K(f"v_cvt_pk_bf16_f32 v{o}, v32, v33")
        K(f"v_lshrrev_b32 v{o+1}, 16, v32")
        K(f"v_cndmask_b32 v{o}, 0, v{o}, vcc")
        K(f"v_cndmask_b32 v{o+1}, 0, v{o+1}, vcc")
        K(f"v_mov_b32 v{o+2}, 0\nv_mov_b32 v{o+3}, 0")
    K("v_cmp_eq_u32 vcc, 1, v3")
    K(f"s_lshl_b32 s{T0}, s{S_W}, 8")
    K(f"s_add_u32 s{T0}, s{T0}, {RSTAT}")
    K(f"v_cndmask_b32 v32, v{VR[0]}, v{VR[1]}, vcc")
    K("v_lshlrev_b32 v33, 2, v1")
    K(f"v_add_u32 v33, s{T0}, v33")
    K("ds_write_b32 v33, v32")
    K("v_lshlrev_b32 v33, 4, v3")
    K(f"v_add_u32 v33, s{T0}, v33")
    RM = 64
    for rt in range(2):
        for q in range(4): K(f"ds_read_b128 {v(RM+16*rt+4*q,4)}, v33 offset:{rt*128+q*32}")
    for sl in (1, 2, 0):
        for rt in range(2):
            acc = v(ACC + 16*(2*sl+rt), 16); M = v(40+4*rt, 4); C = v(48+4*sl, 4)
            if sl == 0: K(f"v_mfma_f32_32x32x16_bf16 {acc}, {C}, {M}, {acc}")
            else:       K(f"v_mfma_f32_32x32x16_bf16 {acc}, {M}, {C}, {acc}")
    K(f"s_mov_b32 s{T0+6}, 0x3fb8aa3b")
    K(f"s_mov_b32 s{T0+7}, 0x3fb8aa3b")
    K(f"s_mov_b32 s{T0+8}, 0x358637bd")
    K(f"s_mov_b32 s{T0+9}, 0x358637bd")
    SLOG = f"s[{T0+6}:{T0+7}]"; SEPS = f"s[{T0+8}:{T0+9}]"
    K("s_waitcnt lgkmcnt(0)")
    K("s_nop 3")
    KA_, VA_, QA_ = ACC+32, ACC+64, ACC
    def phi_pairs(base, n, T):
        for i in range(0, n, 8):
            for j in range(0, 8, 2): K(f"v_pk_mul_f32 v[{T+j}:{T+j+1}], v[{base+i+j}:{base+i+j+1}], {SLOG}")
            for j in range(8): K(f"v_exp_f32 v{T+j}, v{T+j} clamp")
            for j in range(8): K(f"v_max_f32 v{base+i+j}, 0, v{base+i+j}")
            for j in range(0, 8, 2): K(f"v_pk_add_f32 v[{T+j}:{T+j+1}], v[{T+j}:{T+j+1}], {SEPS}")
            for j in range(0, 8, 2): K(f"v_pk_add_f32 v[{base+i+j}:{base+i+j+1}], v[{base+i+j}:{base+i+j+1}], v[{T+j}:{T+j+1}]")
    for i in range(0, 32, 2): K(f"v_pk_mul_f32 v[{KA_+i}:{KA_+i+1}], v[{KA_+i}:{KA_+i+1}], v[{RM+i}:{RM+i+1}]")
    phi_pairs(KA_, 32, 32)
    for i in range(0, 32, 2): K(f"v_pk_mul_f32 v[{VA_+i}:{VA_+i+1}], v[{VA_+i}:{VA_+i+1}], v[{RM+i}:{RM+i+1}]")
    PK = 96; PV = 112
    for i in range(16):
        K(f"v_cvt_pk_bf16_f32 v{PK+i}, v{KA_+2*i}, v{KA_+2*i+1}")
        K(f"v_cvt_pk_bf16_f32 v{PV+i}, v{VA_+2*i}, v{VA_+2*i+1}")
    KVD = 64
    first = True
    for rt in range(2):
        for ks in range(2):
            c = "0" if first else v(KVD, 16)
            K(f"v_mfma_f32_32x32x16_bf16 {v(KVD,16)}, {v(PK+8*rt+4*ks,4)}, {v(PV+8*rt+4*ks,4)}, {c}")
            first = False
    K(f"v_pk_add_f32 v[28:29], v[{KA_}:{KA_+1}], v[{KA_+2}:{KA_+3}]")
    for i in range(4, 32, 2): K(f"v_pk_add_f32 v[28:29], v[28:29], v[{KA_+i}:{KA_+i+1}]")
    K("v_add_f32 v28, v28, v29")
    K("v_mov_b32 v29, v28")
    K("s_nop 1")
    K("v_permlane32_swap_b32 v29, v28")
    K("s_nop 1")
    K("v_add_f32 v28, v28, v29")
    K(f"s_mul_i32 s{T0}, s{S_CH}, 4352")
    K(f"s_add_u32 s{T0}, s{T0}, {X3B}")
    K("v_lshlrev_b32 v6, 4, v1")
    K(f"v_add_u32 v8, s{T0}, v6")
    K("v_lshlrev_b32 v9, 2, v1")
    K(f"v_add_u32 v9, s{T0}, v9")
    K(f"s_cmp_eq_u32 s{S_RH}, 0")
    K("s_cbranch_scc1 L_kvw0")
    K("s_nop 3")
    for qd in range(4): K(f"ds_write_b128 v8, {v(KVD+4*qd,4)} offset:{qd*1024}")
    K("ds_write_b32 v9, v28 offset:4096")
    K("s_waitcnt lgkmcnt(0)")
    BAR("X3")
    K("s_branch L_kvw1")
    K.label("L_kvw0")
    K("s_barrier")
    for qd in range(4): K(f"ds_read_b128 {v(32+4*qd,4)}, v8 offset:{qd*1024}")
    K("ds_read_b32 v48, v9 offset:4096")
    K(f"s_lshl_b32 s{T0}, s{S_CT}, 1")
    K(f"s_add_u32 s{T0}, s{T0}, s{S_CH}")
    K(f"s_lshl_b32 s{T0}, s{T0}, 4")
    K(f"s_add_u32 s{T0}, s{T0}, s{S_RB}")
    K(f"s_mul_i32 s{T0}, s{T0}, {KVP_STRIDE}")
    K(f"s_add_u32 s{T0}, s{T0}, s{S_KVPOFF}")
    K("v_lshlrev_b32 v7, 2, v1")
    K("v_add_u32 v7, 2048, v7")
    K("s_waitcnt lgkmcnt(0)")
    for i in range(0, 16, 2): K(f"v_pk_add_f32 v[{KVD+i}:{KVD+i+1}], v[{KVD+i}:{KVD+i+1}], v[{32+i}:{33+i}]")
    K("v_add_f32 v28, v28, v48")
    for i in range(8): K(f"v_cvt_pk_bf16_f32 v{32+i}, v{KVD+2*i}, v{KVD+2*i+1}")
    for h in range(2): K(f"buffer_store_dwordx4 {v(32+4*h,4)}, v6, {WS}, s{T0} offen offset:{h*1024} sc1")
    K("v_cmp_gt_u32 vcc, 32, v1")
    K("s_and_saveexec_b64 s[90:91], vcc")
    K(f"buffer_store_dword v28, v7, {WS}, s{T0} offen sc1")
    K("s_mov_b64 exec, s[90:91]")
    K("s_waitcnt vmcnt(0)")
    K.label("L_kvw1")
    ST(10)
    BAR("A3")
    for rt in range(2):
        for i in range(0, 16, 2):
            K(f"v_pk_mul_f32 v[{QA_+16*rt+i}:{QA_+16*rt+i+1}], v[{QA_+16*rt+i}:{QA_+16*rt+i+1}], v[{VR[rt]}:{VR[rt]+1}] op_sel_hi:[1,0]")
    phi_pairs(QA_, 32, 32)
    PQ = 96
    for i in range(16): K(f"v_cvt_pk_bf16_f32 v{PQ+i}, v{QA_+2*i}, v{QA_+2*i+1}")
    ST(11)
    BAR("B3")
    ST(12)
    m_load_sum()
    BAR("C3")
    K(f"s_mul_i32 s{T0}, s{S_CH}, 24576")
    K(f"v_add_u32 v8, s{T0}, v6")
    K("v_lshlrev_b32 v9, 4, v3")
    K(f"v_add_u32 v9, s{T0}, v9")
    slots = [0, 8192, 49152, 49152+8192]
    for si, so in enumerate(slots):
        for qd in range(4): K(f"ds_read_b128 {v(128+16*si+4*qd,4)}, v8 offset:{so+qd*1024}")
        if si & 1: K("s_waitcnt lgkmcnt(0)")
    for si, so in enumerate(slots):
        for qd in range(4): K(f"ds_read_b128 {v(32+16*si+4*qd,4)}, v9 offset:{so+4096+32*qd}")
        if si == 1: K("s_waitcnt lgkmcnt(0)")
    for i in range(0, 16, 2):
        K(f"v_pk_add_f32 v[{128+i}:{129+i}], v[{128+i}:{129+i}], v[{144+i}:{145+i}]")
        K(f"v_pk_add_f32 v[{160+i}:{161+i}], v[{160+i}:{161+i}], v[{176+i}:{177+i}]")
        K(f"v_pk_add_f32 v[{128+i}:{129+i}], v[{128+i}:{129+i}], v[{160+i}:{161+i}]")
    for i in range(8): K(f"v_cvt_pk_bf16_f32 v{176+i}, v{128+2*i}, v{128+2*i+1}")
    K("s_waitcnt lgkmcnt(0)")
    for rt in range(2):
        acc = v(144+16*rt, 16)
        K(f"v_mfma_f32_32x32x16_bf16 {acc}, v[176:179], {v(PQ+8*rt,4)}, 0")
        K(f"v_mfma_f32_32x32x16_bf16 {acc}, v[180:183], {v(PQ+8*rt+4,4)}, {acc}")
    for i in range(0, 16, 2):
        K(f"v_pk_add_f32 v[{32+i}:{33+i}], v[{32+i}:{33+i}], v[{48+i}:{49+i}]")
        K(f"v_pk_add_f32 v[{64+i}:{65+i}], v[{64+i}:{65+i}], v[{80+i}:{81+i}]")
        K(f"v_pk_add_f32 v[{32+i}:{33+i}], v[{32+i}:{33+i}], v[{64+i}:{65+i}]")
    for rt in range(2):
        D = 48 + 2*rt
        for i in range(8):
            t = 56 + 2*(i & 1)
            K(f"v_lshlrev_b32 v{t}, 16, v{PQ+8*rt+i}")
            K(f"v_and_b32 v{t+1}, 0xffff0000, v{PQ+8*rt+i}")
            if i == 0: K(f"v_pk_mul_f32 v[{D}:{D+1}], v[{t}:{t+1}], v[{32+2*i}:{33+2*i}]")
            else:      K(f"v_pk_fma_f32 v[{D}:{D+1}], v[{t}:{t+1}], v[{32+2*i}:{33+2*i}], v[{D}:{D+1}]")
    for rt in range(2): K(f"v_add_f32 v{48+2*rt}, v{48+2*rt}, v{49+2*rt}")
    for rt in range(2): K(f"v_mov_b32 v{49+2*rt}, v{48+2*rt}")
    K("s_nop 1")
    for rt in range(2): K(f"v_permlane32_swap_b32 v{49+2*rt}, v{48+2*rt}")
    K("s_nop 1")
    for rt in range(2):
        K(f"v_add_f32 v{48+2*rt}, v{48+2*rt}, v{49+2*rt}")
        K(f"v_add_f32 v{48+2*rt}, s{T0+8}, v{48+2*rt}")
        K(f"v_rcp_f32 v{48+2*rt}, v{48+2*rt}")
    K("s_nop 0")
    for rt in range(2):
        acc = 144 + 16*rt
        for i in range(0, 16, 2):
            K(f"v_pk_mul_f32 v[{acc+i}:{acc+i+1}], v[{acc+i}:{acc+i+1}], v[{48+2*rt}:{49+2*rt}] op_sel_hi:[1,0]")
        for qq in range(2):
            o = 64 + 8*rt + 4*qq
            for j in range(4): K(f"v_cvt_pk_bf16_f32 v{o+j}, v{acc+8*qq+2*j}, v{acc+8*qq+2*j+1}")
    K("s_nop 1")
    for rt in range(2):
        for qq in range(2):
            o = 64 + 8*rt + 4*qq
            K(f"v_permlane32_swap_b32 v{o}, v{o+2}")
            K(f"v_permlane32_swap_b32 v{o+1}, v{o+3}")
    tile_write(O_TB, 64)
    K("s_waitcnt lgkmcnt(0)")
    BAR("S4")
    tile_store(O_TB, WS, f"s{S_OOFF}")
    ST(13)
    aaddr(0)
    baddr(BA, 16384)
    GACC = 128; GF = [32, 80]
    for i in range(32): K(f"v_mov_b32 v{GACC+i}, 0")
    K("s_waitcnt vmcnt(0)")
    BAR("A4"); BAR("B4")
    ST(14); STC(54)
    def reads2(st):
        r = []
        for ks in range(4):
            for rt in range(2): r.append(f"ds_read_b128 {v(st+12*ks+4*rt,4)}, v{AA[ks]} offset:{rt*4096}")
            for t in range(2):  r.append(f"ds_read_b64_tr_b16 {v(st+12*ks+8+2*t,2)}, v{BA} offset:{ks*2048+t*512}")
        return r
    def mfmas2(st):
        m = []
        for ks in range(4):
            for rt in range(2):
                acc = v(GACC+16*rt, 16)
                m.append(f"v_mfma_f32_32x32x16_bf16 {acc}, {v(st+12*ks+8,4)}, {v(st+12*ks+4*rt,4)}, {acc}")
        return m
    def adv2():
        K(f"s_add_u32 s{T0+4}, s{T0+4}, 1")
        K(f"s_cmp_eq_u32 s{T0+4}, {G2N}")
        K(f"s_cselect_b32 s{T0+5}, {(-(G2N-1)*G2STG) & 0xffffffff:#x}, s{T0+2}")
        K(f"s_cselect_b32 s{T0+4}, 0, s{T0+4}")
        for r in AA + [BA]: K(f"v_add_u32 v{r}, s{T0+5}, v{r}")
    K(f"s_mov_b32 s{T0+2}, {G2STG}")
    K(f"s_mov_b32 s{T0+4}, 0")
    K(f"s_mov_b32 s{T0+3}, 0")
    BAR("G2.0")
    for x in reads2(GF[0]): K(x)
    adv2()
    K.label("L_g2loop")
    for half in range(2):
        c_ = GF[half]; n_ = GF[half ^ 1]
        K("s_waitcnt lgkmcnt(0)")
        if half == 1:
            K(f"s_cmp_eq_u32 s{T0+3}, 14")
            K("s_cbranch_scc1 L_g2last")
        K("s_barrier")
        ms = mfmas2(c_); rs = reads2(n_)
        for i, m in enumerate(ms):
            K(m)
            for x in rs[2*i:2*i+2]: K(x)
        adv2()
        if half == 1:
            K(f"s_add_u32 s{T0+3}, s{T0+3}, 2")
            K("s_branch L_g2loop")
            K.label("L_g2last")
            for m in ms: K(m)
    bars["C"].append("G2.loop15")
    ST(15); STC(55)
    BAR("D5")
    K("s_nop 7")
    for rt in range(2):
        acc = GACC + 16*rt
        for qq in range(2):
            a = acc + 8*qq
            for j in range(4): K(f"v_permlane32_swap_b32 v{a+j}, v{a+4+j}")
    for rt in range(2):
        acc = GACC + 16*rt
        for qq in range(2):
            a = acc + 8*qq; r = XT + 8*rt + 4*qq
            for j in range(4):
                t = 56 + 2*(j & 1)
                K(f"v_lshlrev_b32 v{t}, 16, v{r+j}")
                K(f"v_and_b32 v{t+1}, 0xffff0000, v{r+j}")
                K(f"v_pk_add_f32 v[{a+2*j}:{a+2*j+1}], v[{a+2*j}:{a+2*j+1}], v[{t}:{t+1}]")
                acc_stats(qq == 0 and j == 0, rt, a+2*j)
                K(f"v_cvt_pk_bf16_f32 v{r+j}, v{a+2*j}, v{a+2*j+1}")
    K(f"s_cmp_eq_u32 s{S_LAYER}, 1")
    K("s_cbranch_scc1 L_final")
    stats_pre(S2, Q2, XA_SX)
    K("s_waitcnt lgkmcnt(0)")
    BAR("S5")
    stats_post(f"{WS_STX2:#x}")
    ST(16)
    K("s_waitcnt vmcnt(0)")
    BAR("A5"); BAR("B5")
    ST(17)
    stats_load(f"{WS_STX2:#x}", 64)
    K(f"s_mov_b32 s{S_LAYER}, 1")
    K(f"s_mov_b32 s{S_XAOFF}, {WS_XA[1]:#x}")
    K(f"s_mov_b32 s{S_STXA}, {WS_STXA[1]:#x}")
    K(f"s_mov_b32 s{S_KVPOFF}, {WS_KVP[1]:#x}")
    K(f"s_mov_b32 s{S_OOFF}, {WS_O[1]:#x}")
    K("s_waitcnt vmcnt(0)")
    stats_reduce(64)
    K("s_branch L_etail")
    K.label("L_final")
    tile_write(XA_TB, XT)
    K("s_waitcnt lgkmcnt(0)")
    K("s_barrier")
    tile_store(XA_TB, srd(S_OUT), "0", sc="")
    ST(18)
    if stamp:
        K("s_waitcnt vmcnt(0)")
        ST(19); STC(61)
        K(f"s_lshl_b32 s{T0}, s2, 3")
        K(f"s_add_u32 s{T0}, s{T0}, s{S_W}")
        K(f"s_lshl_b32 s{T0}, s{T0}, 8")
        K(f"s_add_u32 s{T0}, s{T0}, {200*MB:#x}")
        K("v_lshlrev_b32 v5, 2, v1")
        K(f"buffer_store_dword v{STV}, v5, {WS}, s{T0} offen")
    K("s_endpgm")

    cur[0] = "H"
    K.label("L_helper")
    SLW = T0+10
    K(f"s_sub_u32 s{SLW}, s{S_W}, 4")
    def master(ops):
        lab = K.newlabel("nm")
        K(f"s_cmp_eq_u32 s{S_W}, 4")
        K(f"s_cbranch_scc0 {lab}")
        K("v_cmp_eq_u32 vcc, 0, v1")
        K("s_and_saveexec_b64 s[90:91], vcc")
        K("v_mov_b32 v6, 1")
        for (op, kind, ph) in ops:
            base = S_ROWCNT if kind == "row" else S_COLCNT
            if op == "go":
                K(f"s_lshl_b32 s{T0}, s{S_RB}, 2")
                K(f"v_mov_b32 v5, s{T0}")
                K(f"s_lshl_b32 s{T0}, s{S_CT}, 2")
                K(f"s_add_u32 s{T0}, s{T0}, 64")
                K(f"v_mov_b32 v8, s{T0}")
                l = K.newlabel("go"); le = K.newlabel("goe")
                K(f"s_mov_b32 s{T0+1}, 0")
                K.label(l)
                K(f"buffer_load_dword v7, v5, {srd(S_DBG)}, 0 offen sc1")
                K(f"buffer_load_dword v9, v8, {srd(S_DBG)}, 0 offen sc1")
                K(f"s_add_u32 s{T0+1}, s{T0+1}, 1")
                K(f"s_cmp_gt_u32 s{T0+1}, 0x40000")
                K(f"s_cbranch_scc1 {le}")
                K("s_waitcnt vmcnt(0)")
                K("v_and_b32 v7, v7, v9")
                K("v_cmp_ne_u32 vcc, 1, v7")
                K(f"s_cbranch_vccnz {l}")
                K.label(le)
                continue
            if isinstance(ph, int): K(f"s_add_u32 s{T0}, s{base}, {ph*CNT_PH}")
            else:                   K(f"s_add_u32 s{T0}, s{base}, {ph}")
            K(f"v_mov_b32 v5, s{T0}")
            if op == "arrive":
                K(f"buffer_atomic_add v6, v5, {WS}, 0 offen sc1")
            else:
                l = K.newlabel("pw"); le = K.newlabel("pwe")
                K(f"s_mov_b32 s{T0+1}, 0")
                K.label(l)
                K(f"buffer_load_dword v7, v5, {WS}, 0 offen sc1")
                K(f"s_add_u32 s{T0+1}, s{T0+1}, 1")
                K(f"s_cmp_gt_u32 s{T0+1}, 0x40000")
                K(f"s_cbranch_scc1 {le}")
                K("s_waitcnt vmcnt(0)")
                K("v_cmp_ne_u32 vcc, 16, v7")
                K(f"s_cbranch_vccnz {l}")
                K.label(le)
        K("s_waitcnt vmcnt(0)")
        K("s_mov_b64 exec, s[90:91]")
        K.label(lab)
    K("s_waitcnt vmcnt(0)")
    STH(2)
    BAR("A0")
    STH(3)
    master([("go", None, None), ("arrive", "col", C_KVT)])
    K("v_lshrrev_b32 v5, 3, v1")
    K("v_and_b32 v6, 7, v1")
    K("v_lshrrev_b32 v7, 4, v1")
    VA = 16; VB = 32+96; VO = 20
    VB = 216
    K(f"s_lshl_b32 s{T0}, s{S_RB}, 18")
    K(f"s_lshl_b32 s{T0+1}, s{SLW}, 16")
    K(f"s_add_u32 s{T0}, s{T0}, s{T0+1}")
    for i in range(4):
        K(f"v_xor_b32 v8, {4*(i&1)}, v7")
        K("v_xor_b32 v8, v8, v6")
        K("v_lshlrev_b32 v8, 4, v8")
        K(f"v_add_u32 v9, {8*i}, v5")
        K("v_lshl_add_u32 v8, v9, 11, v8")
        K(f"v_add_u32 v{VA+i}, s{T0}, v8")
    K("v_bfe_u32 v8, v1, 4, 1")
    K("v_lshlrev_b32 v8, 2, v8")
    K("v_xor_b32 v8, v8, v6")
    K("v_lshlrev_b32 v8, 4, v8")
    K(f"s_movk_i32 s{T0}, 6144")
    K(f"v_mul_lo_u32 v9, v5, s{T0}")
    K("v_add_u32 v9, v9, v8")
    K(f"s_lshl_b32 s{T0+1}, s{S_CT}, 7")
    for i in range(6):
        K(f"s_mul_i32 s{T0+2}, s{SLW}, 6")
        K(f"s_add_u32 s{T0+2}, s{T0+2}, {i}")
        K(f"s_lshr_b32 s{T0+3}, s{T0+2}, 3")
        K(f"s_and_b32 s{T0+4}, s{T0+2}, 7")
        K(f"s_lshl_b32 s{T0+3}, s{T0+3}, 11")
        K(f"s_mul_i32 s{T0+4}, s{T0+4}, {8*6144}")
        K(f"s_add_u32 s{T0+3}, s{T0+3}, s{T0+4}")
        K(f"s_add_u32 s{T0+3}, s{T0+3}, s{T0+1}")
        K(f"v_add_u32 v{VB+i}, s{T0+3}, v9")
    K("v_lshl_add_u32 v9, v5, 11, v8")
    for i in range(2):
        K(f"s_lshl_b32 s{T0+2}, s{SLW}, 1")
        K(f"s_add_u32 s{T0+2}, s{T0+2}, {i}")
        K(f"s_lshl_b32 s{T0+2}, s{T0+2}, 14")
        K(f"s_add_u32 s{T0+2}, s{T0+2}, s{T0+1}")
        K(f"v_add_u32 v{VO+i}, s{T0+2}, v9")
    SLA, SLB1, SLB2 = T0+11, T0+12, T0+13
    K(f"s_lshl_b32 s{SLA}, s{SLW}, 12")
    K(f"s_mul_i32 s{SLB1}, s{SLW}, 6144")
    K(f"s_add_u32 s{SLB1}, s{SLB1}, 16384")
    K(f"s_lshl_b32 s{SLB2}, s{SLW}, 11")
    K(f"s_add_u32 s{SLB2}, s{SLB2}, 16384")
    SKA, SKB = T0+14, T0+15
    def issueA(buf):
        K(f"s_add_u32 m0, s{SLA}, {buf}")
        for i in range(4):
            K("s_nop 0")
            K(f"buffer_load_dwordx4 v{VA+i}, {WS}, s{SKA} offen sc1 lds")
            if i < 3: K("s_add_u32 m0, m0, 1024")
        K(f"s_add_u32 s{SKA}, s{SKA}, 128")
    def issueW(buf):
        K(f"s_add_u32 m0, s{SLB1}, {buf}")
        for i in range(6):
            K("s_nop 0")
            K(f"buffer_load_dwordx4 v{VB+i}, {srd(S_WQKV)}, s{SKB} offen lds")
            if i < 5: K("s_add_u32 m0, m0, 1024")
        K(f"s_add_u32 s{SKB}, s{SKB}, {64*6144}")
    def issueO(buf):
        K(f"s_add_u32 m0, s{SLB2}, {buf}")
        for i in range(2):
            K("s_nop 0")
            K(f"buffer_load_dwordx4 v{VO+i}, {srd(S_WO)}, s{SKB} offen lds")
            if i < 1: K("s_add_u32 m0, m0, 1024")
        K(f"s_add_u32 s{SKB}, s{SKB}, {64*2048}")
    g1buf = lambda s_: ((s_ + 2) % G1N) * G1STG
    def extra_loads():
        K("v_lshrrev_b32 v176, 1, v1")
        K("v_and_b32 v177, 1, v1")
        K("v_lshlrev_b32 v178, 11, v176")
        K("v_lshl_add_u32 v178, v177, 6, v178")
        K(f"s_lshl_b32 s{T0}, s{S_RB}, 18")
        K(f"s_lshl_b32 s{T0+1}, s{T0+10}, 16")
        K(f"s_add_u32 s{T0}, s{T0}, s{T0+1}")
        K(f"s_lshl_b32 s{T0+1}, s{S_CT}, 7")
        K(f"s_add_u32 s{T0}, s{T0}, s{T0+1}")
        for i in range(4): K(f"buffer_load_dwordx4 {v(128+4*i,4)}, v178, {srd(S_Q)}, s{T0} offen offset:{16*i}")
        K("v_lshrrev_b32 v179, 3, v1")
        K("v_and_b32 v180, 7, v1")
        K(f"s_movk_i32 s{T0+5}, 6144")
        K("v_lshlrev_b32 v179, 3, v179")
        K(f"v_mul_lo_u32 v179, v179, s{T0+5}")
        K("v_lshl_add_u32 v179, v180, 4, v179")
        K(f"s_mul_i32 s{T0+6}, s{S_RB}, {64*6144}")
        K(f"s_lshl_b32 s{T0+7}, s{S_CT}, 7")
        K(f"s_add_u32 s{T0+6}, s{T0+6}, s{T0+7}")
        K(f"s_sub_u32 s{T0+7}, s{T0+10}, 1")
        K(f"s_max_i32 s{T0+7}, s{T0+7}, 0")
        K(f"s_lshl_b32 s{T0+7}, s{T0+7}, 11")
        K(f"s_add_u32 s{T0+6}, s{T0+6}, s{T0+7}")
        for i in range(8):
            K(f"buffer_load_dwordx4 {v(144+4*i,4)}, v179, {srd(S_WQKV)}, s{T0+6} offen")
            if i < 7: K(f"s_add_u32 s{T0+6}, s{T0+6}, 6144")
        K("v_lshrrev_b32 v181, 3, v1")
        K("v_lshlrev_b32 v181, 11, v181")
        K("v_lshl_add_u32 v181, v180, 4, v181")
        K(f"s_lshl_b32 s{T0+6}, s{S_RB}, 17")
        K(f"s_lshl_b32 s{T0+7}, s{T0+10}, 15")
        K(f"s_add_u32 s{T0+6}, s{T0+6}, s{T0+7}")
        K(f"s_lshl_b32 s{T0+7}, s{S_CT}, 7")
        K(f"s_add_u32 s{T0+6}, s{T0+6}, s{T0+7}")
        K(f"buffer_load_dwordx4 v[208:211], v181, {srd(S_WO)}, s{T0+6} offen")
        K(f"s_add_u32 s{T0+6}, s{T0+6}, 16384")
        K(f"buffer_load_dwordx4 v[212:215], v181, {srd(S_WO)}, s{T0+6} offen")
        K(f"s_mov_b32 s{SKB}, 0")
        issueW(g1buf(0)); issueW(g1buf(1))
    lw4 = K.newlabel("w4")
    K(f"s_cmp_eq_u32 s{S_W}, 4")
    K(f"s_cbranch_scc1 {lw4}")
    extra_loads()
    K.label(lw4)
    STH(6)
    master([("wait", "col", C_KVT)])
    STH(7)
    BAR("B0")
    STH(8)
    lw5 = K.newlabel("w5")
    K(f"s_cmp_eq_u32 s{S_W}, 4")
    K(f"s_cbranch_scc0 {lw5}")
    extra_loads()
    K.label(lw5)
    K("s_waitcnt vmcnt(22)")
    for i in range(16):
        t = 56 + 2*(i & 1)
        K(f"v_lshlrev_b32 v{t}, 16, v{128+i}")
        K(f"v_and_b32 v{t+1}, 0xffff0000, v{128+i}")
        acc_stats(i == 0, 0, t)
    K(f"v_add_f32 v44, v{S2[0]}, v{S2[0]+1}")
    K(f"v_add_f32 v45, v{Q2[0]}, v{Q2[0]+1}")
    K("s_nop 1")
    K("v_add_f32_dpp v44, v44, v44 quad_perm:[1,0,3,2] row_mask:0xf bank_mask:0xf")
    K("v_add_f32_dpp v45, v45, v45 quad_perm:[1,0,3,2] row_mask:0xf bank_mask:0xf")
    K(f"s_lshl_b32 s{T0}, s{S_RB}, 4")
    K(f"s_add_u32 s{T0}, s{T0}, s{S_CT}")
    K(f"s_lshl_b32 s{T0}, s{T0}, 10")
    K(f"s_lshl_b32 s{T0+1}, s{SLW}, 8")
    K(f"s_add_u32 s{T0}, s{T0}, s{T0+1}")
    K(f"s_add_u32 s{T0}, s{T0}, {WS_STQ:#x}")
    K("v_lshlrev_b32 v46, 3, v176")
    K("s_waitcnt vmcnt(14)")
    K("v_cmp_eq_u32 vcc, 0, v177")
    K("s_and_saveexec_b64 s[90:91], vcc")
    K(f"buffer_store_dwordx2 v[44:45], v46, {WS}, s{T0} offen sc1")
    K("s_mov_b64 exec, s[90:91]")
    K(f"s_cmp_eq_u32 s{SLW}, 0")
    K("s_cbranch_scc1 L_nocs")
    K(f"s_sub_u32 s{T0+8}, s{SLW}, 1")
    for dw in range(4):
        for i in range(8):
            src_ = 144 + 4*i + dw
            t = 190 + 2*dw if i == 0 else 186 + 2*(i & 1)
            K(f"v_lshlrev_b32 v{t}, 16, v{src_}")
            K(f"v_and_b32 v{t+1}, 0xffff0000, v{src_}")
            if i: K(f"v_pk_add_f32 v[{190+2*dw}:{191+2*dw}], v[{190+2*dw}:{191+2*dw}], v[{t}:{t+1}]")
    K("s_nop 1")
    for c in range(8): K(f"v_add_f32_dpp v{190+c}, v{190+c}, v{190+c} row_ror:8 row_mask:0xf bank_mask:0xf")
    for c in range(8): K(f"v_mov_b32 v{200+c}, v{190+c}")
    K("s_nop 1")
    for c in range(8): K(f"v_permlane16_swap_b32 v{200+c}, v{190+c}")
    K("s_nop 1")
    for c in range(8): K(f"v_add_f32 v{190+c}, v{190+c}, v{200+c}")
    for c in range(8): K(f"v_mov_b32 v{200+c}, v{190+c}")
    K("s_nop 1")
    for c in range(8): K(f"v_permlane32_swap_b32 v{200+c}, v{190+c}")
    K("s_nop 1")
    for c in range(8): K(f"v_add_f32 v{190+c}, v{190+c}, v{200+c}")
    K(f"s_lshl_b32 s{T0+6}, s{S_CT}, 4")
    K(f"s_add_u32 s{T0+6}, s{T0+6}, s{S_RB}")
    K(f"s_mul_i32 s{T0+6}, s{T0+6}, 768")
    K(f"s_lshl_b32 s{T0+5}, s{T0+8}, 8")
    K(f"s_add_u32 s{T0+6}, s{T0+6}, s{T0+5}")
    K(f"s_add_u32 s{T0+6}, s{T0+6}, {WS_CSP:#x}")
    K("v_lshlrev_b32 v10, 5, v1")
    K("v_cmp_gt_u32 vcc, 8, v1")
    K("s_and_saveexec_b64 s[90:91], vcc")
    K(f"buffer_store_dwordx4 v[190:193], v10, {WS}, s{T0+6} offen sc1")
    K(f"buffer_store_dwordx4 v[194:197], v10, {WS}, s{T0+6} offen offset:16 sc1")
    K("s_mov_b64 exec, s[90:91]")
    K.label("L_nocs")
    STH(4)
    K("s_waitcnt vmcnt(0)")
    BAR("A1")
    STH(9)
    master([("arrive", "col", C_Y), ("arrive", "row", R_QST), ("wait", "col", C_Y), ("wait", "row", R_QST)])
    STH(10)
    issueW(g1buf(2))
    BAR("B1")
    K("v_lshrrev_b32 v5, 4, v1")
    K("v_lshlrev_b32 v5, 12, v5")
    K("v_and_b32 v6, 15, v1")
    K("v_lshl_add_u32 v5, v6, 4, v5")
    K(f"s_lshl_b32 s{T0}, s{S_CT}, 18")
    K(f"s_lshl_b32 s{T0+1}, s{S_RB}, 8")
    K(f"s_add_u32 s{T0}, s{T0}, s{T0+1}")
    K(f"s_lshl_b32 s{T0+1}, s{SLW}, 16")
    K(f"s_add_u32 s{T0}, s{T0}, s{T0+1}")
    K(f"s_add_u32 s{T0}, s{T0}, {WS_YT:#x}")
    K(f"s_lshl_b32 m0, s{SLW}, 12")
    for i in range(4):
        K("s_nop 0")
        K(f"buffer_load_dwordx4 v5, {WS}, s{T0} offen sc1 lds")
        K(f"s_add_u32 s{T0}, s{T0}, 16384")
        if i < 3: K("s_add_u32 m0, m0, 1024")
    K("s_waitcnt vmcnt(0)")
    BAR("C1")
    K.label("L_hlayer")
    BAR("S2")
    tile_store(XA_TB, WS, f"s{S_XAOFF}")
    K("s_waitcnt vmcnt(0)")
    BAR("A2")
    SPH = T0+17
    K(f"s_mul_i32 s{SPH}, s{S_LAYER}, {3*CNT_PH}")
    K(f"s_add_u32 s{SPH+1}, s{SPH}, {R_XA0*CNT_PH}")
    master([("arrive", "row", f"s{SPH+1}"), ("wait", "row", f"s{SPH+1}")])
    BAR("B2")
    K(f"s_mov_b32 s{SKA}, s{S_XAOFF}")
    for s_ in range(3): issueA(g1buf(s_))
    K("s_waitcnt vmcnt(8)")
    BAR("G1.0")
    for i in range(15):
        if i + 3 <= 15:
            issueA(g1buf(i+3)); issueW(g1buf(i+3))
        n = 14 if i == 0 else (20 if i <= 12 else (10 if i == 13 else 0))
        K(f"s_waitcnt vmcnt({n})")
        K("s_barrier")
    bars["H"].append("G1.loop15")
    BAR("X3")
    BAR("A3")
    K(f"s_add_u32 s{SPH+1}, s{S_LAYER}, {C_KVP0}")
    K(f"s_mul_i32 s{SPH+1}, s{SPH+1}, {CNT_PH}")
    master([("arrive", "col", f"s{SPH+1}"), ("wait", "col", f"s{SPH+1}")])
    BAR("B3")
    m_load_sum()
    K(f"s_mov_b32 s{SKB}, 0")
    for j in range(G2N-1): issueO(j*G2STG)
    BAR("C3")
    BAR("S4")
    tile_store(O_TB, WS, f"s{S_OOFF}")
    K("s_waitcnt vmcnt(0)")
    BAR("A4")
    K(f"s_add_u32 s{SPH+1}, s{SPH}, {R_O0*CNT_PH}")
    master([("arrive", "row", f"s{SPH+1}"), ("wait", "row", f"s{SPH+1}")])
    BAR("B4")
    K(f"s_mov_b32 s{SKA}, s{S_OOFF}")
    for j in range(G2N-1): issueA(j*G2STG)
    K("s_waitcnt vmcnt(16)")
    BAR("G2.0")
    waits = [18, 20, 22, 24, 24, 24, 24, 24, 24, 24, 24, 18, 12, 6, 0]
    for i in range(15):
        if i + 5 <= 15:
            b = ((i+5) % G2N) * G2STG
            issueA(b); issueO(b)
        K(f"s_waitcnt vmcnt({waits[i]})")
        K("s_barrier")
    bars["H"].append("G2.loop15")
    BAR("D5")
    K(f"s_cmp_eq_u32 s{S_LAYER}, 1")
    K("s_cbranch_scc1 L_hfinal")
    BAR("S5")
    BAR("A5")
    master([("arrive", "row", R_X2), ("wait", "row", R_X2)])
    K(f"s_mov_b32 s{SKB}, 0")
    for s_ in range(3): issueW(g1buf(s_))
    BAR("B5")
    K(f"s_mov_b32 s{S_LAYER}, 1")
    K(f"s_mov_b32 s{S_XAOFF}, {WS_XA[1]:#x}")
    K(f"s_mov_b32 s{S_KVPOFF}, {WS_KVP[1]:#x}")
    K(f"s_mov_b32 s{S_OOFF}, {WS_O[1]:#x}")
    K("s_branch L_hlayer")
    K.label("L_hfinal")
    K("s_barrier")
    tile_store(XA_TB, srd(S_OUT), "0", sc="")
    if stamp:
        K(f"s_lshl_b32 s{T0}, s2, 3")
        K(f"s_add_u32 s{T0}, s{T0}, s{S_W}")
        K(f"s_lshl_b32 s{T0}, s{T0}, 8")
        K(f"s_add_u32 s{T0}, s{T0}, {200*MB:#x}")
        K("v_lshlrev_b32 v5, 2, v1")
        K(f"buffer_store_dword v{STV}, v5, {WS}, s{T0} offen")
    K.label("L_done")
    K("s_endpgm")
    assert bars["C"] == bars["H"], (bars["C"], bars["H"])
    return K

if __name__ == "__main__":
    stamp = len(sys.argv) > 2 and sys.argv[2] == "stamp"
    K = gen(stamp=stamp)
    hdr = HEADER + f"; @launch grid=(256,1,1) block=(512,1,1) lds={LDS_TOTAL}\n"
    txt = hdr + '.amdgcn_target "amdgcn-amd-amdhsa--gfx950"\n.text\n' + K.text() + '.section .rodata,"a"\n.p2align 6\n' + K.desc()
    open(sys.argv[1], "w").write(txt)
    print(len(txt), "bytes")
```

```python
import sys
from fw import *
MB = 1 << 20
WS_KVT = 0; WS_YT = 4*MB; WS_XA = [8*MB, 12*MB]; WS_O = [16*MB, 20*MB]
WS_KVP = [24*MB, 26*MB]; KVP_STRIDE = 2304
WS_STQ = 30*MB; WS_STXA = [31*MB, 33*MB]; WS_STX2 = 32*MB
WS_CSP = 34*MB; WS_ROWC = 35*MB; WS_COLC = 35*MB + 65536
SZ4 = 4*MB
R_QST, R_XA0, R_O0, R_X2, R_XA1, R_O1 = range(6)
C_KVT, C_Y, C_KVP0, C_KVP1 = range(4)
CNT_PH = 4096
G1STG = 40960; G1N = 4
G2STG = 24576; G2N = 6
LDS_TOTAL = 163840
HE = 0; HO = 4160; UR = 8320; WP = 12928
KVSTAGE = 65536; CSL = 53248; QSX = 54272
XA_TB = 40960; XA_SX = 57344
O_TB = 98304
X3B = 122880; RSTAT = 139264
def MSL(w): return (w >> 1)*24576 + (w & 1)*8192

S_WS = 8; S_K = 12; S_V = 16; S_Q = 20; S_H = 24; S_WQKV = 28; S_WO = 32; S_OUT = 36; S_MISC = 40; S_DBG = 44
S_RB = 48; S_CT = 49; S_W = 50; S_RH = 51; S_CH = 52; S_LAYER = 53
S_XAOFF = 54; S_STXA = 55; S_KVPOFF = 56; S_OOFF = 57; S_ROWCNT = 58; S_COLCNT = 59
T0 = 60
XT = 224; YT = 240
WS = f"s[{S_WS}:{S_WS+3}]"
STV = 31
VM = [16, 18]; VR = [20, 22]; VCS = [17, 19, 21]
VST = [24, 25]; VTW = 26; VLIN = 27
def srd(b): return f"s[{b}:{b+3}]"

CODEPF = False
CODE_BYTES = 28160
ALIGN = True
def gen(stamp=False):
    K = Kern("interleave_layers__ssm_conv_h3__linear_attn_block__prompt_kernel", 256, 512, LDS_TOTAL, vgpr=256, sgpr=100)
    bars = {"C": [], "H": []}
    cur = ["C"]
    def BAR(tag, both=False):
        if both: bars["C"].append(tag); bars["H"].append(tag)
        else: bars[cur[0]].append(tag)
        K("s_barrier")
    def ST(i):
        if stamp and cur[0] == "C":
            K("s_memrealtime s[88:89]")
            K(f"s_mul_i32 s92, s{S_LAYER}, 24")
            K(f"s_add_u32 m0, s92, {i}")
            K("s_waitcnt lgkmcnt(0)")
            K(f"v_writelane_b32 v{STV}, s88, m0")
    def STH(i):
        if stamp:
            K("s_memrealtime s[88:89]")
            K("s_waitcnt lgkmcnt(0)")
            K(f"v_writelane_b32 v{STV}, s88, {i}")
    def STC(i):
        if stamp:
            K("s_memtime s[88:89]")
            K("s_waitcnt lgkmcnt(0)")
            K(f"v_writelane_b32 v{STV}, s88, {i}")
    K("s_cmp_ge_u32 s2, 256")
    K("s_cbranch_scc1 L_done")
    K.ldptr(4, "k"); K.ldptr(6, "v")
    for (r, n) in ((60, "q"), (62, "ssm_k"), (64, "wqkv"), (66, "wo"), (68, "out"), (70, "ws"), (72, "dbg"), (74, "shift_k"), (76, "ssm_D")):
        K.ldptr(r, n)
    K("v_and_b32 v1, 63, v0")
    K("v_lshrrev_b32 v5, 6, v0")
    K("v_and_b32 v2, 31, v1")
    K("v_lshrrev_b32 v3, 5, v1")
    K(f"v_readfirstlane_b32 s{S_W}, v5")
    K("s_and_b32 s78, s2, 7\ns_lshr_b32 s79, s2, 3")
    K("s_and_b32 s80, s78, 1\ns_lshl_b32 s80, s80, 3\ns_and_b32 s81, s79, 7")
    K(f"s_add_u32 s{S_RB}, s80, s81")
    K("s_lshr_b32 s80, s78, 1\ns_lshl_b32 s80, s80, 2\ns_lshr_b32 s81, s79, 3")
    K(f"s_add_u32 s{S_CT}, s80, s81")
    K(f"s_and_b32 s{S_RH}, s{S_W}, 1")
    K(f"s_bfe_u32 s{S_CH}, s{S_W}, 0x10001")
    K(f"s_mov_b32 s{S_LAYER}, 0")
    K(f"s_lshl_b32 s78, s{S_RB}, 8")
    K(f"s_add_u32 s{S_ROWCNT}, s78, {WS_ROWC:#x}")
    K(f"s_lshl_b32 s78, s{S_CT}, 8")
    K(f"s_add_u32 s{S_COLCNT}, s78, {WS_COLC:#x}")
    K(f"s_mov_b32 s{S_XAOFF}, {WS_XA[0]:#x}")
    K(f"s_mov_b32 s{S_STXA}, {WS_STXA[0]:#x}")
    K(f"s_mov_b32 s{S_KVPOFF}, {WS_KVP[0]:#x}")
    K(f"s_mov_b32 s{S_OOFF}, {WS_O[0]:#x}")
    K("s_waitcnt lgkmcnt(0)")
    K.srd(S_K, 4, 0, SZ4); K.srd(S_V, 6, 0, SZ4); K.srd(S_MISC, 74, 0, 8192)
    K("v_and_b32 v32, 7, v0")
    K("v_lshrrev_b32 v33, 3, v0")
    K(f"s_lshl_b32 s78, s{S_RB}, 18")
    K(f"s_lshl_b32 s79, s{S_CT}, 7")
    K("s_add_u32 s78, s78, s79")
    K("s_sub_u32 s78, s78, 6144")
    K("v_lshlrev_b32 v34, 12, v33")
    K("v_lshl_add_u32 v34, v32, 4, v34")
    K("v_add_u32 v34, s78, v34")
    for j in range(1, 5): K(f"v_add_u32 v{34+j}, {2048*j}, v34")
    K(f"s_lshl_b32 s79, s{S_CT}, 9")
    K("v_lshlrev_b32 v39, 6, v32")
    K("v_add_u32 v39, s79, v39")
    for j in range(5): K(f"buffer_load_dwordx4 {v(40+4*j,4)}, v{34+j}, {srd(S_K)}, 0 offen")
    for i in range(2): K(f"buffer_load_dwordx4 {v(60+4*i,4)}, v{37+i}, {srd(S_V)}, 0 offen")
    for i in range(4): K(f"buffer_load_dwordx4 {v(68+4*i,4)}, v39, {srd(S_MISC)}, 0 offen offset:{16*i}")
    K.srd(S_Q, 60, 0, SZ4); K.srd(S_H, 62, 0, SZ4)
    K.srd(S_WQKV, 64, 0, 6*MB); K.srd(S_WO, 66, 0, 2*MB); K.srd(S_OUT, 68, 0, SZ4); K.srd(S_WS, 70, 0, 256*MB)
    K.srd(S_DBG, 72, 0, 256); K.srd(84, 76, 0, 2048)
    if stamp: K(f"v_mov_b32 v{STV}, 0")
    ST(0); STC(60)
    if CODEPF:
        K(f"s_cmp_eq_u32 s{S_W}, 7")
        K("s_cbranch_scc0 L_tw2")
        K("s_getpc_b64 s[80:81]")
        K.label("L_pcref")
        K("s_and_b32 s80, s80, 0xffffff00")
        K("s_and_b32 s81, s81, 0xffff")
        K(f"s_mov_b32 s82, {CODE_BYTES}")
        K("s_mov_b32 s83, 0x00020000")
        K("s_lshr_b32 s78, s2, 3")
        K("s_lshl_b32 s78, s78, 10")
        K("v_lshlrev_b32 v5, 4, v1")
        K("buffer_load_dwordx4 v[216:219], v5, s[80:83], s78 offen")
        K.label("L_tw2")
    K(f"s_cmp_eq_u32 s{S_W}, 7")
    K("s_cbranch_scc0 L_noinit")
    K("v_cmp_gt_u32 vcc, 8, v1")
    K("s_and_saveexec_b64 s[90:91], vcc")
    K("v_lshlrev_b32 v5, 12, v1")
    K("v_mov_b32 v6, 0")
    K("v_mov_b32 v7, 1")
    K(f"s_cmp_eq_u32 s{S_CT}, 0")
    K("s_cbranch_scc0 L_init2")
    K(f"buffer_store_dword v6, v5, {WS}, s{S_ROWCNT} offen sc1")
    K("s_waitcnt vmcnt(0)")
    K(f"s_lshl_b32 s{T0}, s{S_RB}, 2")
    K(f"v_mov_b32 v8, s{T0}")
    K(f"buffer_store_dword v7, v8, {srd(S_DBG)}, 0 offen sc1")
    K.label("L_init2")
    K(f"s_cmp_eq_u32 s{S_RB}, 0")
    K("s_cbranch_scc0 L_init3")
    K(f"buffer_store_dword v6, v5, {WS}, s{S_COLCNT} offen sc1")
    K("s_waitcnt vmcnt(0)")
    K(f"s_lshl_b32 s{T0}, s{S_CT}, 2")
    K(f"s_add_u32 s{T0}, s{T0}, 64")
    K(f"v_mov_b32 v8, s{T0}")
    K(f"buffer_store_dword v7, v8, {srd(S_DBG)}, 0 offen sc1")
    K.label("L_init3")
    K("s_mov_b64 exec, s[90:91]")
    K.label("L_noinit")
    K("v_lshrrev_b32 v5, 3, v1")
    K("v_and_b32 v6, 7, v1")
    K("v_lshrrev_b32 v7, 4, v1")
    K(f"s_lshl_b32 s{T0}, s{S_RB}, 18")
    K(f"s_lshl_b32 s{T0+1}, s{S_W}, 15")
    K(f"s_add_u32 s{T0}, s{T0}, s{T0+1}")
    K(f"s_lshl_b32 s{T0+1}, s{S_CT}, 7")
    K(f"s_add_u32 s{T0}, s{T0}, s{T0+1}")
    for i in range(2):
        K(f"v_xor_b32 v8, {4*i}, v7")
        K("v_xor_b32 v8, v8, v6")
        K("v_lshlrev_b32 v8, 4, v8")
        K(f"v_add_u32 v9, {8*i}, v5")
        K("v_lshl_add_u32 v8, v9, 11, v8")
        K(f"v_add_u32 v{VST[i]}, s{T0}, v8")
    K(f"s_lshl_b32 s{T0}, s{S_W}, 11")
    K(f"v_lshlrev_b32 v{VLIN}, 4, v1")
    K(f"v_add_u32 v{VLIN}, s{T0}, v{VLIN}")
    K("v_bfe_u32 v8, v2, 1, 3")
    K(f"s_lshl_b32 s{T0}, s{S_CH}, 2")
    K(f"v_add_u32 v9, s{T0}, v3")
    K("v_xor_b32 v8, v8, v9")
    K("v_lshlrev_b32 v8, 4, v8")
    K("v_lshl_add_u32 v8, v2, 7, v8")
    K(f"s_lshl_b32 s{T0}, s{S_RH}, 13")
    K(f"v_add_u32 v{VTW}, s{T0}, v8")
    K("v_sub_u32 v5, 63, v33")
    K("v_lshlrev_b32 v6, 2, v32")
    K("v_xor_b32 v5, v5, v6")
    K("v_lshlrev_b32 v5, 2, v5")
    K("v_lshl_add_u32 v5, v32, 11, v5")
    K(f"v_add_u32 v5, {KVSTAGE}, v5")
    STH(11)
    K("s_waitcnt vmcnt(0)")
    STH(1)
    KU, SU, VU, AC = 96, 102, 106, 108
    for e in range(8):
        dw = e >> 1
        b = 16*(e & 1)
        def unpack(dst, src):
            if e & 1: K(f"v_and_b32 v{dst}, 0xffff0000, v{src}")
            else:     K(f"v_lshlrev_b32 v{dst}, 16, v{src}")
        for j in range(5): unpack(KU + b + j, 40 + 4*j + dw)
        for i in range(2): unpack(VU + b + i, 60 + 4*i + dw)
        K(f"v_lshlrev_b32 v{SU+b+0}, 16, v{68+2*e}")
        K(f"v_and_b32 v{SU+b+1}, 0xffff0000, v{68+2*e}")
        K(f"v_lshlrev_b32 v{SU+b+2}, 16, v{68+2*e+1}")
        K(f"v_and_b32 v{SU+b+3}, 0xffff0000, v{68+2*e+1}")
        for i in range(2): K(f"v_mul_f32 v{AC+b+i}, v{KU+b+i}, v{SU+b+3}")
        for tap in (2, 1, 0):
            for i in range(2): K(f"v_fmac_f32 v{AC+b+i}, v{KU+b+3+i-tap}, v{SU+b+tap}")
        for i in range(2): K(f"v_mul_f32 v{AC+b+i}, v{AC+b+i}, v{VU+b+i}")
        K(f"v_cvt_pk_bf16_f32 v{AC+b+2}, v{AC+b+1}, v{AC+b+0}")
        K(f"ds_write_b32 v5, v{AC+b+2} offset:{e*256}")
    K("s_waitcnt lgkmcnt(0)")
    BAR("S0", both=True)
    K("v_lshrrev_b32 v6, 4, v1")
    K("v_and_b32 v7, 15, v1")
    K(f"s_lshl_b32 s{T0}, s{S_W}, 3")
    K(f"v_add_u32 v6, s{T0}, v6")
    K(f"v_mov_b32 v8, s{S_W}")
    K("v_xor_b32 v8, v8, v7")
    K("v_lshlrev_b32 v8, 4, v8")
    K("v_lshl_add_u32 v8, v6, 8, v8")
    K(f"v_add_u32 v8, {KVSTAGE}, v8")
    K("ds_read_b128 v[40:43], v8")
    K("ds_read_b128 v[44:47], v8 offset:1024")
    K(f"s_lshl_b32 s{T0+1}, s{S_CT}, 18")
    K(f"s_add_u32 s{T0+2}, s{S_RB}, 1")
    K(f"s_lshl_b32 s{T0+2}, s{T0+2}, 8")
    K(f"s_sub_u32 s{T0+2}, 4096, s{T0+2}")
    K(f"s_add_u32 s{T0+1}, s{T0+1}, s{T0+2}")
    K(f"s_add_u32 s{T0+2}, s{T0+1}, 16384")
    K("v_lshlrev_b32 v9, 12, v6")
    K("v_lshl_add_u32 v9, v7, 4, v9")
    K("s_waitcnt lgkmcnt(1)")
    K(f"buffer_store_dwordx4 v[40:43], v9, {WS}, s{T0+1} offen sc1")
    K("s_waitcnt lgkmcnt(0)")
    K(f"buffer_store_dwordx4 v[44:47], v9, {WS}, s{T0+2} offen sc1")
    K(f"s_cmp_ge_u32 s{S_W}, 4")
    K("s_cbranch_scc1 L_helper")

    def tile_write(TB, regs):
        K(f"v_add_u32 v5, {TB}, v{VTW}")
        K("v_xor_b32 v6, 32, v5")
        for rt in range(2):
            for qq in range(2):
                K(f"ds_write_b128 v{5+qq}, {v(regs+8*rt+4*qq,4)} offset:{rt*4096}")
    def tile_store(TB, sr, soff, sc="sc1"):
        K(f"v_add_u32 v5, {TB}, v{VLIN}")
        K("ds_read_b128 v[32:35], v5")
        K("ds_read_b128 v[36:39], v5 offset:1024")
        K("s_waitcnt lgkmcnt(1)")
        K(f"buffer_store_dwordx4 v[32:35], v{VST[0]}, {sr}, {soff} offen {sc}")
        K("s_waitcnt lgkmcnt(0)")
        K(f"buffer_store_dwordx4 v[36:39], v{VST[1]}, {sr}, {soff} offen {sc}")
    def stats_pre(S2, Q2, SX):
        T = 40
        for rt in range(2):
            K(f"v_add_f32 v{T+2*rt}, v{S2[rt]}, v{S2[rt]+1}")
            K(f"v_add_f32 v{T+2*rt+1}, v{Q2[rt]}, v{Q2[rt]+1}")
        for j in range(4): K(f"v_mov_b32 v{T+4+j}, v{T+j}")
        K("s_nop 1")
        for j in range(4): K(f"v_permlane32_swap_b32 v{T+4+j}, v{T+j}")
        K("v_cmp_eq_u32 vcc, 1, v3")
        for j in range(4): K(f"v_add_f32 v{T+j}, v{T+j}, v{T+4+j}")
        K(f"v_cndmask_b32 v{T+8}, v{T}, v{T+2}, vcc")
        K(f"v_cndmask_b32 v{T+9}, v{T+1}, v{T+3}, vcc")
        K(f"s_lshl_b32 s{T0}, s{S_RH}, 9")
        K(f"s_add_u32 s{T0}, s{T0}, {SX}")
        K("v_lshlrev_b32 v7, 3, v1")
        K(f"v_add_u32 v{T+10}, s{T0}, v7")
        l = K.newlabel("sp")
        K(f"s_cmp_eq_u32 s{S_CH}, 0")
        K(f"s_cbranch_scc1 {l}")
        K(f"ds_write_b64 v{T+10}, v[{T+8}:{T+9}]")
        K.label(l)
    def stats_post(stoff):
        T = 40
        l = K.newlabel("sq")
        K(f"s_cmp_eq_u32 s{S_CH}, 1")
        K(f"s_cbranch_scc1 {l}")
        K(f"ds_read_b64 v[{T+12}:{T+13}], v{T+10}")
        K(f"s_lshl_b32 s{T0}, s{S_RB}, 4")
        K(f"s_add_u32 s{T0}, s{T0}, s{S_CT}")
        K(f"s_lshl_b32 s{T0}, s{T0}, 10")
        K(f"s_lshl_b32 s{T0+1}, s{S_RH}, 9")
        K(f"s_add_u32 s{T0}, s{T0}, s{T0+1}")
        K(f"s_add_u32 s{T0}, s{T0}, {stoff}")
        K("v_lshlrev_b32 v7, 3, v1")
        K("s_waitcnt lgkmcnt(0)")
        K(f"v_pk_add_f32 v[{T+8}:{T+9}], v[{T+8}:{T+9}], v[{T+12}:{T+13}]")
        K(f"buffer_store_dwordx2 v[{T+8}:{T+9}], v7, {WS}, s{T0} offen sc1")
        K.label(l)
    def stats_load(stoff, R):
        K(f"s_lshl_b32 s{T0}, s{S_RB}, 14")
        K(f"s_lshl_b32 s{T0+1}, s{S_RH}, 9")
        K(f"s_add_u32 s{T0}, s{T0}, s{T0+1}")
        K(f"s_add_u32 s{T0}, s{T0}, {stoff}")
        K("v_lshlrev_b32 v5, 13, v3")
        K("v_lshl_add_u32 v5, v2, 3, v5")
        for j in range(8):
            for rt in range(2):
                K(f"buffer_load_dwordx2 v[{R+16*rt+2*j}:{R+16*rt+2*j+1}], v5, {WS}, s{T0} offen offset:{rt*256} sc1")
            if j < 7: K(f"s_add_u32 s{T0}, s{T0}, 1024")
    def stats_reduce(R):
        for j in range(1, 8):
            for rt in range(2):
                b = R + 16*rt
                K(f"v_pk_add_f32 v[{b}:{b+1}], v[{b}:{b+1}], v[{b+2*j}:{b+2*j+1}]")
        for rt in range(2):
            b = R + 16*rt
            K(f"v_mov_b32 v{b+2}, v{b}")
            K(f"v_mov_b32 v{b+3}, v{b+1}")
        K("s_nop 1")
        for rt in range(2):
            b = R + 16*rt
            K(f"v_permlane32_swap_b32 v{b+2}, v{b}")
            K(f"v_permlane32_swap_b32 v{b+3}, v{b+1}")
        K(f"s_mov_b32 s{T0}, 0x3a800000")
        K(f"s_mov_b32 s{T0+1}, 0x3727c5ac")
        for rt in range(2):
            b = R + 16*rt
            K(f"v_pk_add_f32 v[{b}:{b+1}], v[{b}:{b+1}], v[{b+2}:{b+3}]")
        for rt in range(2):
            b = R + 16*rt
            K(f"v_mul_f32 v{VM[rt]}, s{T0}, v{b}")
            K(f"v_mul_f32 v{b+1}, s{T0}, v{b+1}")
        for rt in range(2):
            b = R + 16*rt
            K(f"v_fma_f32 v{b+1}, -v{VM[rt]}, v{VM[rt]}, v{b+1}")
            K(f"v_max_f32 v{b+1}, 0, v{b+1}")
            K(f"v_add_f32 v{b+1}, s{T0+1}, v{b+1}")
            K(f"v_rsq_f32 v{VR[rt]}, v{b+1}")
        K("s_nop 0")
    S2 = [48, 52]; Q2 = [50, 54]
    def acc_stats(first, rt, P):
        if first:
            K(f"v_pk_mul_f32 v[{Q2[rt]}:{Q2[rt]+1}], v[{P}:{P+1}], v[{P}:{P+1}]")
            K(f"v_mov_b32 v{S2[rt]}, v{P}")
            K(f"v_mov_b32 v{S2[rt]+1}, v{P+1}")
        else:
            K(f"v_pk_fma_f32 v[{Q2[rt]}:{Q2[rt]+1}], v[{P}:{P+1}], v[{P}:{P+1}], v[{Q2[rt]}:{Q2[rt]+1}]")
            K(f"v_pk_add_f32 v[{S2[rt]}:{S2[rt]+1}], v[{S2[rt]}:{S2[rt]+1}], v[{P}:{P+1}]")
    def e_phase():
        n = 0
        for rt in range(2):
            for i in range(8):
                t = 56 + 6*(n % 3); n += 1
                x = XT + 8*rt + i; y = YT + 8*rt + i
                K(f"v_lshlrev_b32 v{t}, 16, v{x}")
                K(f"v_and_b32 v{t+1}, 0xffff0000, v{x}")
                K(f"v_lshlrev_b32 v{t+2}, 16, v{y}")
                K(f"v_and_b32 v{t+3}, 0xffff0000, v{y}")
                K(f"v_pk_add_f32 v[{t+4}:{t+5}], v[{t}:{t+1}], v[{VM[rt]}:{VM[rt]+1}] op_sel_hi:[1,0] neg_lo:[0,1] neg_hi:[0,1]")
                K(f"v_pk_mul_f32 v[{t+4}:{t+5}], v[{t+4}:{t+5}], v[{VR[rt]}:{VR[rt]+1}] op_sel_hi:[1,0]")
                K(f"v_pk_fma_f32 v[{t}:{t+1}], v[{t+4}:{t+5}], v[{t+2}:{t+3}], v[{t}:{t+1}]")
                acc_stats(i == 0, rt, t)
                K(f"v_cvt_pk_bf16_f32 v{x}, v{t}, v{t+1}")
    def baddr(dst, base):
        K("v_bfe_u32 v13, v1, 4, 1")
        K("v_bfe_u32 v14, v1, 2, 2")
        K("v_and_b32 v15, 3, v1")
        K(f"v_lshlrev_b32 v{dst}, 1, v13")
        K("v_lshrrev_b32 v13, 1, v15")
        K(f"v_add_u32 v{dst}, v{dst}, v13")
        K(f"s_lshl_b32 s{T0}, s{S_CH}, 2")
        K(f"v_add_u32 v{dst}, s{T0}, v{dst}")
        K("v_bfe_u32 v13, v14, 1, 1")
        K("v_lshlrev_b32 v13, 2, v13")
        K(f"v_xor_b32 v{dst}, v{dst}, v13")
        K(f"v_lshlrev_b32 v{dst}, 4, v{dst}")
        K("v_and_b32 v13, 1, v15")
        K(f"v_lshl_add_u32 v{dst}, v13, 3, v{dst}")
        K("v_lshl_add_u32 v13, v3, 3, v14")
        K(f"v_lshl_add_u32 v{dst}, v13, 7, v{dst}")
        K(f"v_add_u32 v{dst}, {base}, v{dst}")
    def aaddr(base):
        K("v_bfe_u32 v8, v2, 1, 3")
        K("v_xor_b32 v8, v8, v3")
        K("v_lshlrev_b32 v8, 4, v8")
        K("v_lshl_add_u32 v8, v2, 7, v8")
        K(f"s_lshl_b32 s{T0}, s{S_RH}, 13")
        K(f"s_add_u32 s{T0}, s{T0}, {base}")
        K(f"v_add_u32 v8, s{T0}, v8")
        for ks in range(1, 4): K(f"v_xor_b32 v{8+ks}, {ks<<5}, v8")
    def m_load_sum():
        K(f"s_lshl_b32 s{T0}, s{S_CT}, 1")
        K(f"s_add_u32 s{T0}, s{T0}, s{S_CH}")
        K(f"s_lshl_b32 s{T0}, s{T0}, 4")
        K(f"s_lshr_b32 s{T0+1}, s{S_W}, 2")
        K(f"s_lshl_b32 s{T0+1}, s{T0+1}, 1")
        K(f"s_add_u32 s{T0+1}, s{T0+1}, s{S_RH}")
        K(f"s_lshl_b32 s{T0+1}, s{T0+1}, 2")
        K(f"s_add_u32 s{T0}, s{T0}, s{T0+1}")
        K(f"s_mul_i32 s{T0}, s{T0}, {KVP_STRIDE}")
        K(f"s_add_u32 s{T0}, s{T0}, s{S_KVPOFF}")
        K("v_lshlrev_b32 v6, 4, v1")
        K("v_lshlrev_b32 v7, 2, v2")
        K("v_add_u32 v7, 2048, v7")
        T = 128; Z = 48
        for p in range(4):
            for h in range(2):
                K(f"buffer_load_dwordx4 {v(T+8*p+4*h,4)}, v6, {WS}, s{T0} offen offset:{h*1024} sc1")
            K(f"buffer_load_dword v{Z+p}, v7, {WS}, s{T0} offen sc1")
            if p < 3: K(f"s_add_u32 s{T0}, s{T0}, {KVP_STRIDE}")
        K(f"s_lshr_b32 s{T0+3}, s{S_W}, 1")
        K(f"s_mul_i32 s{T0+3}, s{T0+3}, 24576")
        K(f"s_lshl_b32 s{T0+4}, s{S_RH}, 13")
        K(f"s_add_u32 s{T0+3}, s{T0+3}, s{T0+4}")
        K(f"v_add_u32 v8, s{T0+3}, v6")
        K("v_lshlrev_b32 v9, 2, v1")
        K(f"v_add_u32 v9, s{T0+3}, v9")
        for p in range(4):
            K(f"s_waitcnt vmcnt({3*(3-p)})")
            for i in range(8):
                r = T + 8*p + i
                if p == 0:
                    K(f"v_lshlrev_b32 v{32+2*i}, 16, v{r}")
                    K(f"v_and_b32 v{33+2*i}, 0xffff0000, v{r}")
                else:
                    t = 52 + 2*(i & 1)
                    K(f"v_lshlrev_b32 v{t}, 16, v{r}")
                    K(f"v_and_b32 v{t+1}, 0xffff0000, v{r}")
                    K(f"v_pk_add_f32 v[{32+2*i}:{33+2*i}], v[{32+2*i}:{33+2*i}], v[{t}:{t+1}]")
        for p in range(1, 4): K(f"v_add_f32 v{Z}, v{Z}, v{Z+p}")
        for qd in range(4): K(f"ds_write_b128 v8, {v(32+4*qd,4)} offset:{qd*1024}")
        K(f"ds_write_b32 v9, v{Z} offset:4096")
        K("s_waitcnt lgkmcnt(0)")

    cur[0] = "C"
    K("s_waitcnt vmcnt(0)")
    ST(1)
    BAR("A0")
    HR = 128
    K("v_lshlrev_b32 v4, 11, v2")
    K("v_lshl_add_u32 v4, v3, 4, v4")
    K(f"s_lshl_b32 s{T0}, s{S_RB}, 18")
    K(f"s_lshl_b32 s{T0+1}, s{S_RH}, 17")
    K(f"s_add_u32 s{T0}, s{T0}, s{T0+1}")
    K(f"s_lshl_b32 s{T0+1}, s{S_CT}, 7")
    K(f"s_add_u32 s{T0}, s{T0}, s{T0+1}")
    K(f"s_lshl_b32 s{T0+1}, s{S_CH}, 6")
    K(f"s_add_u32 s{T0}, s{T0}, s{T0+1}")
    K(f"s_add_u32 s{T0+1}, s{T0}, 0x10000")
    SD, SDO, SLB = T0+10, T0+11, T0+12
    K(f"s_lshl_b32 s{SD}, s{S_CT}, 6")
    K(f"s_lshl_b32 s{SDO}, s{S_RB}, 2")
    K(f"s_add_u32 s{SD}, s{SD}, s{SDO}")
    K(f"s_add_u32 s{SD}, s{SD}, s{S_W}")
    K(f"s_lshl_b32 s{SDO}, s{SD}, 12")
    K(f"s_mul_i32 s{SLB}, s{S_W}, {WP}")
    K("v_lshlrev_b32 v149, 4, v1")
    for j in range(4):
        K(f"buffer_load_dwordx4 {v(HR+4*j,4)}, v149, {srd(S_H)}, s{SDO} offen offset:{1024*j}")
    for j in range(4):
        K(f"buffer_load_dword v{HR+16+j}, v149, {srd(S_H)}, s{SDO} offen offset:{1024*j+16}")
    K(f"s_lshl_b32 s{T0+5}, s{SD}, 1")
    K(f"v_mov_b32 v150, s{T0+5}")
    K("buffer_load_ushort v148, v150, s[84:87], 0 offen")
    K(f"s_mov_b32 s{T0+8}, s{T0}")
    K(f"s_mov_b32 s{T0+9}, s{T0+1}")
    SD, SDO, SLB = T0+10, T0+11, T0+12
    K("v_lshlrev_b32 v6, 4, v1")
    K(f"v_add_u32 v7, s{SLB}, v6")
    K("v_mov_b32 v88, 0\nv_mov_b32 v89, 0\nv_mov_b32 v90, 0\nv_mov_b32 v91, 0")
    K("v_cmp_gt_u32 vcc, 2, v1")
    K("s_and_saveexec_b64 s[90:91], vcc")
    K(f"ds_write_b128 v7, v[88:91] offset:{HE}")
    K(f"ds_write_b128 v7, v[88:91] offset:{HO}")
    K("s_mov_b64 exec, s[90:91]")
    K("v_cmp_gt_u32 vcc, 30, v1")
    K("s_and_saveexec_b64 s[90:91], vcc")
    K(f"ds_write_b128 v7, v[88:91] offset:{UR+4096}")
    K("s_mov_b64 exec, s[90:91]")
    K("s_waitcnt vmcnt(0)")
    for j in range(4): K(f"ds_write_b128 v7, {v(HR+4*j,4)} offset:{HE+32+1024*j}")
    for j in range(4):
        b = HR + 4*j; o = 92 + 4*(j & 1)
        K(f"v_alignbit_b32 v{o}, v{b+1}, v{b}, 16")
        K(f"v_alignbit_b32 v{o+1}, v{b+2}, v{b+1}, 16")
        K(f"v_alignbit_b32 v{o+2}, v{b+3}, v{b+2}, 16")
        K(f"v_alignbit_b32 v{o+3}, v{HR+16+j}, v{b+3}, 16")
        K(f"ds_write_b128 v7, {v(o,4)} offset:{HO+32+1024*j}")
    K(f"v_lshlrev_b32 v88, 16, v{HR}")
    K("v_cmp_eq_u32 vcc, 0, v1")
    K("s_and_saveexec_b64 s[90:91], vcc")
    K(f"ds_write_b32 v7, v88 offset:{HO+28}")
    K("s_mov_b64 exec, s[90:91]")
    K("v_lshlrev_b32 v30, 16, v148")
    BAR("B0")
    ST(2); STC(52)
    for j in range(4):
        K(f"buffer_load_dwordx4 {v(64+4*j,4)}, v6, {WS}, s{SDO} offen offset:{1024*j} sc1")
    K("v_and_b32 v5, 15, v1")
    K("v_lshrrev_b32 v13, 4, v1")
    K("v_lshrrev_b32 v8, 1, v5")
    K("v_lshl_add_u32 v8, v13, 2, v8")
    K("v_lshlrev_b32 v8, 2, v8")
    K("v_and_b32 v9, 1, v5")
    K(f"v_mov_b32 v10, {HO}")
    K(f"v_mov_b32 v11, {HE + 4}")
    K("v_cmp_eq_u32 vcc, 1, v9")
    K("s_nop 1")
    K("v_cndmask_b32 v10, v10, v11, vcc")
    K("v_add_u32 v8, v8, v10")
    K(f"v_add_u32 v8, s{SLB}, v8")
    AR = [8, 9, 10, 11]
    for m in range(1, 4): K(f"v_add_u32 v{AR[m]}, {1024*m}, v8")
    K("v_lshlrev_b32 v12, 4, v13")
    K("v_lshlrev_b32 v14, 5, v5")
    K("v_sub_u32 v12, v12, v14")
    K(f"v_add_u32 v12, {UR + 4032 + 32 - 512*7}, v12")
    K(f"v_add_u32 v12, s{SLB}, v12")
    CACC = 32
    K(f"v_add_u32 v7, s{SLB}, v6")
    K("s_waitcnt vmcnt(0)")
    BAR("B0b")
    for rt in range(2):
        for qq in range(2):
            K(f"buffer_load_dwordx4 {v(XT+8*rt+4*qq,4)}, v4, {srd(S_Q)}, s{T0+8+rt} offen offset:{32*qq}")
    for j in range(4): K(f"ds_write_b128 v7, {v(64+4*j,4)} offset:{UR+1024*j}")
    for i in range(32): K(f"v_mov_b32 v{CACC+i}, 0")
    K("s_waitcnt lgkmcnt(0)")
    SET = [64, 128]
    def cloads(c0, st):
        ins = []
        for c1 in range(8):
            o = 16*c0 + 128*(c1 & 1)
            ins.append(f"ds_read_b128 {v(st+32+4*c1,4)}, v12 offset:{512*(7-c1)+64*c0}")
            ins.append(f"ds_read2_b32 {v(st+4*c1,2)}, v{AR[c1>>1]} offset0:{o} offset1:{o+1}")
            ins.append(f"ds_read2_b32 {v(st+4*c1+2,2)}, v{AR[c1>>1]} offset0:{o+2} offset1:{o+3}")
        return ins
    for x in cloads(0, SET[0]): K(x)
    K(f"s_mov_b32 s{T0+5}, 0")
    if ALIGN: K(".p2align 6")
    K.label("L_conv")
    for half in range(2):
        st = SET[half]
        nxt = cloads(half+1, SET[half ^ 1])
        K("s_waitcnt lgkmcnt(0)")
        n = 0
        for c1 in range(8):
            for g in range(c1, 8):
                K(f"v_mfma_f32_16x16x32_bf16 {v(CACC+4*g,4)}, {v(st+4*c1,4)}, {v(st+32+4*(g-c1),4)}, {v(CACC+4*g,4)}")
                if n < len(nxt): K(nxt[n])
                n += 1
    for r in AR + [12]: K(f"v_add_u32 v{r}, 128, v{r}")
    K(f"s_add_u32 s{T0+5}, s{T0+5}, 1")
    K(f"s_cmp_lt_u32 s{T0+5}, 4")
    K("s_cbranch_scc1 L_conv")
    K("s_waitcnt lgkmcnt(0)")
    ST(3); STC(53)
    K("v_lshlrev_b32 v12, 3, v13")
    K("v_add_u32 v12, v12, v14")
    K(f"v_sub_u32 v8, {UR + 4088 - 512*7}, v12")
    K(f"v_add_u32 v8, s{SLB}, v8")
    for g in range(8): K(f"ds_read_b64 {v(64+2*g,2)}, v8 offset:{512*(7-g)}")
    K(f"s_add_u32 s{T0+5}, s{SDO}, {WS_YT:#x}")
    K(f"v_add_u32 v13, s{SLB}, v12")
    K("s_waitcnt lgkmcnt(0)")
    for g in range(8):
        a = CACC + 4*g; kd = 64 + 2*g; b = 96 + 16*(g & 1)
        K(f"v_and_b32 v{b}, 0xffff0000, v{kd+1}")
        K(f"v_lshlrev_b32 v{b+1}, 16, v{kd+1}")
        K(f"v_and_b32 v{b+2}, 0xffff0000, v{kd}")
        K(f"v_lshlrev_b32 v{b+3}, 16, v{kd}")
        K(f"v_pk_fma_f32 v[{b}:{b+1}], v[{b}:{b+1}], v[30:31], v[{a}:{a+1}] op_sel_hi:[1,0,1]")
        K(f"v_pk_fma_f32 v[{b+2}:{b+3}], v[{b+2}:{b+3}], v[30:31], v[{a+2}:{a+3}] op_sel_hi:[1,0,1]")
        K(f"v_cvt_pk_bf16_f32 v{b+12}, v{b}, v{b+1}\nv_cvt_pk_bf16_f32 v{b+13}, v{b+2}, v{b+3}")
        K(f"ds_write_b64 v13, {v(b+12,2)} offset:{512*g}")
    K("v_lshlrev_b32 v6, 4, v1")
    K(f"v_add_u32 v7, s{SLB}, v6")
    K("s_waitcnt lgkmcnt(0)")
    for j in range(4): K(f"ds_read_b128 {v(64+4*j,4)}, v7 offset:{1024*j}")
    for j in range(4):
        K(f"s_waitcnt lgkmcnt({3-j})")
        K(f"buffer_store_dwordx4 {v(64+4*j,4)}, v6, {WS}, s{T0+5} offen offset:{1024*j} sc1")
    ST(4)
    K("s_waitcnt vmcnt(0)")
    BAR("A1"); BAR("B1")
    ST(5)
    stats_load(f"{WS_STQ:#x}", 64)
    K(f"s_mul_i32 s{T0}, s{S_CT}, {16*768}")
    K(f"s_add_u32 s{T0}, s{T0}, {WS_CSP:#x}")
    K(f"s_lshl_b32 s{T0+1}, s{S_CH}, 7")
    K(f"s_add_u32 s{T0}, s{T0}, s{T0+1}")
    K("v_lshlrev_b32 v5, 2, v2")
    K("v_mul_u32_u24 v6, 6144, v3")
    K("v_add_u32 v5, v5, v6")
    CS = 96
    for j in range(8):
        for sl in range(3):
            K(f"buffer_load_dword v{CS+3*j+sl}, v5, {WS}, s{T0} offen offset:{sl*256} sc1")
        if j < 7: K(f"s_add_u32 s{T0}, s{T0}, 768")
    BAR("C1")
    K("v_bfe_u32 v5, v1, 2, 2")
    K("v_lshl_add_u32 v5, v3, 3, v5")
    K("v_lshlrev_b32 v5, 8, v5")
    K("v_bfe_u32 v6, v1, 4, 1")
    K("v_lshl_add_u32 v5, v6, 5, v5")
    K("v_and_b32 v6, 3, v1")
    K("v_lshl_add_u32 v5, v6, 3, v5")
    K(f"s_lshl_b32 s{T0}, s{S_CH}, 13")
    K(f"s_lshl_b32 s{T0+1}, s{S_RH}, 7")
    K(f"s_add_u32 s{T0}, s{T0}, s{T0+1}")
    K(f"v_add_u32 v5, s{T0}, v5")
    for rt in range(2):
        for qq in range(2):
            for t in range(2):
                K(f"ds_read_b64_tr_b16 {v(YT+8*rt+4*qq+2*t,2)}, v5 offset:{(16*qq+4*t)*256 + rt*64}")
    K("s_waitcnt vmcnt(0)")
    stats_reduce(64)
    for sl in range(3):
        for j in range(1, 8): K(f"v_add_f32 v{CS+sl}, v{CS+sl}, v{CS+3*j+sl}")
    for sl in range(3): K(f"v_mov_b32 v{CS+4+sl}, v{CS+sl}")
    K("s_nop 1")
    for sl in range(3): K(f"v_permlane32_swap_b32 v{CS+4+sl}, v{CS+sl}")
    K("s_nop 1")
    for sl in range(3): K(f"v_add_f32 v{VCS[sl]}, v{CS+sl}, v{CS+4+sl}")
    K("s_waitcnt lgkmcnt(0)")
    K.label("L_etail")
    e_phase()
    tile_write(XA_TB, XT)
    stats_pre(S2, Q2, XA_SX)
    K("s_waitcnt lgkmcnt(0)")
    BAR("S2")
    tile_store(XA_TB, WS, f"s{S_XAOFF}")
    stats_post(f"s{S_STXA}")
    ST(6)
    aaddr(2*G1STG)
    AA = [8, 9, 10, 11]; BA = 12
    baddr(BA, 2*G1STG + 16384)
    ACC = 128; FR = [32, 52]
    for i in range(96): K(f"v_mov_b32 v{ACC+i}, 0")
    K("s_waitcnt vmcnt(0)")
    BAR("A2"); BAR("B2")
    ST(7)
    stats_load(f"s{S_STXA}", 72)
    def reads(st_regs, ks):
        r = []
        for rt in range(2): r.append(f"ds_read_b128 {v(st_regs+4*rt,4)}, v{AA[ks]} offset:{rt*4096}")
        for sl in range(3):
            for t in range(2):
                r.append(f"ds_read_b64_tr_b16 {v(st_regs+8+4*sl+2*t,2)}, v{BA} offset:{sl*8192+ks*2048+t*512}")
        return r
    def mfmas(st_regs):
        m = []
        for rt in range(2):
            A = v(st_regs+4*rt, 4)
            for sl in range(3):
                B = v(st_regs+8+4*sl, 4); acc = v(ACC + 16*(2*sl+rt), 16)
                if sl == 0: m.append(f"v_mfma_f32_32x32x16_bf16 {acc}, {B}, {A}, {acc}")
                else:       m.append(f"v_mfma_f32_32x32x16_bf16 {acc}, {A}, {B}, {acc}")
        return m
    def interleave(ms, rs):
        return [ms[0]] + rs[:2] + [ms[1]] + rs[2:4] + [ms[2]] + rs[4:6] + [ms[3]] + rs[6:] + ms[4:]
    K(f"s_mov_b32 s{T0+2}, {G1STG}")
    K(f"s_mov_b32 s{T0+3}, 0")
    K(f"s_mov_b32 s{T0+4}, 2")
    BAR("G1.0")
    ST(8); STC(50)
    for x in reads(FR[0], 0): K(x)
    if ALIGN: K(".p2align 6")
    K.label("L_g1loop")
    for ks in range(4):
        c_ = FR[ks & 1]; n_ = FR[(ks+1) & 1]
        if ks == 3:
            K(f"s_add_u32 s{T0+4}, s{T0+4}, 1")
            K(f"s_cmp_eq_u32 s{T0+4}, {G1N}")
            K(f"s_cselect_b32 s{T0+5}, {(-(G1N-1)*G1STG) & 0xffffffff:#x}, s{T0+2}")
            K(f"s_cselect_b32 s{T0+4}, 0, s{T0+4}")
            K(f"s_add_u32 s{T0+3}, s{T0+3}, 1")
            K(f"s_cmp_eq_u32 s{T0+3}, 16")
        K("s_waitcnt lgkmcnt(0)")
        if ks < 3:
            for x in interleave(mfmas(c_), reads(n_, ks+1)): K(x)
        else:
            K("s_cbranch_scc1 L_g1last")
            for r in AA + [BA]: K(f"v_add_u32 v{r}, s{T0+5}, v{r}")
            K("s_barrier")
            for x in interleave(mfmas(c_), reads(n_, 0)): K(x)
            K("s_branch L_g1loop")
            K.label("L_g1last")
            for x in mfmas(c_): K(x)
    bars["C"].append("G1.loop15")
    ST(9); STC(51)
    K("s_waitcnt vmcnt(0)")
    stats_reduce(72)
    def split(x, hi, lo):
        K(f"v_and_b32 v{hi}, 0xffff0000, v{x}")
        K(f"v_sub_f32 v{lo}, v{x}, v{hi}")
    K("v_cmp_eq_u32 vcc, 0, v3")
    for rt in range(2):
        split(VM[rt], 32, 33)
        o = 40 + 4*rt
        K("v_lshrrev_b32 v34, 16, v32")
        K(f"v_or_b32 v{o}, v34, v32")
        K(f"v_cvt_pk_bf16_f32 v{o+1}, v33, v33")
        K(f"v_and_b32 v{o+1}, 0xffff, v{o+1}")
        K(f"v_cndmask_b32 v{o}, 0, v{o}, vcc")
        K(f"v_cndmask_b32 v{o+1}, 0, v{o+1}, vcc")
        K(f"v_mov_b32 v{o+2}, 0\nv_mov_b32 v{o+3}, 0")
    for sl in range(3):
        K(f"v_sub_f32 v35, 0, v{VCS[sl]}")
        split(35, 32, 33)
        o = 48 + 4*sl
        K(f"v_cvt_pk_bf16_f32 v{o}, v32, v33")
        K(f"v_lshrrev_b32 v{o+1}, 16, v32")
        K(f"v_cndmask_b32 v{o}, 0, v{o}, vcc")
        K(f"v_cndmask_b32 v{o+1}, 0, v{o+1}, vcc")
        K(f"v_mov_b32 v{o+2}, 0\nv_mov_b32 v{o+3}, 0")
    K("v_cmp_eq_u32 vcc, 1, v3")
    K(f"s_lshl_b32 s{T0}, s{S_W}, 8")
    K(f"s_add_u32 s{T0}, s{T0}, {RSTAT}")
    K(f"v_cndmask_b32 v32, v{VR[0]}, v{VR[1]}, vcc")
    K("v_lshlrev_b32 v33, 2, v1")
    K(f"v_add_u32 v33, s{T0}, v33")
    K("ds_write_b32 v33, v32")
    K("v_lshlrev_b32 v33, 4, v3")
    K(f"v_add_u32 v33, s{T0}, v33")
    RM = 64
    for rt in range(2):
        for q in range(4): K(f"ds_read_b128 {v(RM+16*rt+4*q,4)}, v33 offset:{rt*128+q*32}")
    for sl in (1, 2, 0):
        for rt in range(2):
            acc = v(ACC + 16*(2*sl+rt), 16); M = v(40+4*rt, 4); C = v(48+4*sl, 4)
            if sl == 0: K(f"v_mfma_f32_32x32x16_bf16 {acc}, {C}, {M}, {acc}")
            else:       K(f"v_mfma_f32_32x32x16_bf16 {acc}, {M}, {C}, {acc}")
    K(f"s_mov_b32 s{T0+6}, 0x3fb8aa3b")
    K(f"s_mov_b32 s{T0+7}, 0x3fb8aa3b")
    K(f"s_mov_b32 s{T0+8}, 0x358637bd")
    K(f"s_mov_b32 s{T0+9}, 0x358637bd")
    SLOG = f"s[{T0+6}:{T0+7}]"; SEPS = f"s[{T0+8}:{T0+9}]"
    K("s_waitcnt lgkmcnt(0)")
    K("s_nop 3")
    KA_, VA_, QA_ = ACC+32, ACC+64, ACC
    def phi_pairs(base, n, T):
        for i in range(0, n, 8):
            for j in range(0, 8, 2): K(f"v_pk_mul_f32 v[{T+j}:{T+j+1}], v[{base+i+j}:{base+i+j+1}], {SLOG}")
            for j in range(8): K(f"v_exp_f32 v{T+j}, v{T+j} clamp")
            for j in range(8): K(f"v_max_f32 v{base+i+j}, 0, v{base+i+j}")
            for j in range(0, 8, 2): K(f"v_pk_add_f32 v[{T+j}:{T+j+1}], v[{T+j}:{T+j+1}], {SEPS}")
            for j in range(0, 8, 2): K(f"v_pk_add_f32 v[{base+i+j}:{base+i+j+1}], v[{base+i+j}:{base+i+j+1}], v[{T+j}:{T+j+1}]")
    for i in range(0, 32, 2): K(f"v_pk_mul_f32 v[{KA_+i}:{KA_+i+1}], v[{KA_+i}:{KA_+i+1}], v[{RM+i}:{RM+i+1}]")
    phi_pairs(KA_, 32, 32)
    for i in range(0, 32, 2): K(f"v_pk_mul_f32 v[{VA_+i}:{VA_+i+1}], v[{VA_+i}:{VA_+i+1}], v[{RM+i}:{RM+i+1}]")
    PK = 96; PV = 112
    for i in range(16):
        K(f"v_cvt_pk_bf16_f32 v{PK+i}, v{KA_+2*i}, v{KA_+2*i+1}")
        K(f"v_cvt_pk_bf16_f32 v{PV+i}, v{VA_+2*i}, v{VA_+2*i+1}")
    KVD = 64
    first = True
    for rt in range(2):
        for ks in range(2):
            c = "0" if first else v(KVD, 16)
            K(f"v_mfma_f32_32x32x16_bf16 {v(KVD,16)}, {v(PK+8*rt+4*ks,4)}, {v(PV+8*rt+4*ks,4)}, {c}")
            first = False
    K(f"v_pk_add_f32 v[28:29], v[{KA_}:{KA_+1}], v[{KA_+2}:{KA_+3}]")
    for i in range(4, 32, 2): K(f"v_pk_add_f32 v[28:29], v[28:29], v[{KA_+i}:{KA_+i+1}]")
    K("v_add_f32 v28, v28, v29")
    K("v_mov_b32 v29, v28")
    K("s_nop 1")
    K("v_permlane32_swap_b32 v29, v28")
    K("s_nop 1")
    K("v_add_f32 v28, v28, v29")
    K(f"s_mul_i32 s{T0}, s{S_CH}, 4352")
    K(f"s_add_u32 s{T0}, s{T0}, {X3B}")
    K("v_lshlrev_b32 v6, 4, v1")
    K(f"v_add_u32 v8, s{T0}, v6")
    K("v_lshlrev_b32 v9, 2, v1")
    K(f"v_add_u32 v9, s{T0}, v9")
    K(f"s_cmp_eq_u32 s{S_RH}, 0")
    K("s_cbranch_scc1 L_kvw0")
    K("s_nop 3")
    for qd in range(4): K(f"ds_write_b128 v8, {v(KVD+4*qd,4)} offset:{qd*1024}")
    K("ds_write_b32 v9, v28 offset:4096")
    K("s_waitcnt lgkmcnt(0)")
    BAR("X3")
    K("s_branch L_kvw1")
    K.label("L_kvw0")
    K("s_barrier")
    for qd in range(4): K(f"ds_read_b128 {v(32+4*qd,4)}, v8 offset:{qd*1024}")
    K("ds_read_b32 v48, v9 offset:4096")
    K(f"s_lshl_b32 s{T0}, s{S_CT}, 1")
    K(f"s_add_u32 s{T0}, s{T0}, s{S_CH}")
    K(f"s_lshl_b32 s{T0}, s{T0}, 4")
    K(f"s_add_u32 s{T0}, s{T0}, s{S_RB}")
    K(f"s_mul_i32 s{T0}, s{T0}, {KVP_STRIDE}")
    K(f"s_add_u32 s{T0}, s{T0}, s{S_KVPOFF}")
    K("v_lshlrev_b32 v7, 2, v1")
    K("v_add_u32 v7, 2048, v7")
    K("s_waitcnt lgkmcnt(0)")
    for i in range(0, 16, 2): K(f"v_pk_add_f32 v[{KVD+i}:{KVD+i+1}], v[{KVD+i}:{KVD+i+1}], v[{32+i}:{33+i}]")
    K("v_add_f32 v28, v28, v48")
    for i in range(8): K(f"v_cvt_pk_bf16_f32 v{32+i}, v{KVD+2*i}, v{KVD+2*i+1}")
    for h in range(2): K(f"buffer_store_dwordx4 {v(32+4*h,4)}, v6, {WS}, s{T0} offen offset:{h*1024} sc1")
    K("v_cmp_gt_u32 vcc, 32, v1")
    K("s_and_saveexec_b64 s[90:91], vcc")
    K(f"buffer_store_dword v28, v7, {WS}, s{T0} offen sc1")
    K("s_mov_b64 exec, s[90:91]")
    K("s_waitcnt vmcnt(0)")
    K.label("L_kvw1")
    ST(10)
    BAR("A3")
    for rt in range(2):
        for i in range(0, 16, 2):
            K(f"v_pk_mul_f32 v[{QA_+16*rt+i}:{QA_+16*rt+i+1}], v[{QA_+16*rt+i}:{QA_+16*rt+i+1}], v[{VR[rt]}:{VR[rt]+1}] op_sel_hi:[1,0]")
    phi_pairs(QA_, 32, 32)
    PQ = 96
    for i in range(16): K(f"v_cvt_pk_bf16_f32 v{PQ+i}, v{QA_+2*i}, v{QA_+2*i+1}")
    ST(11)
    BAR("B3")
    ST(12)
    m_load_sum()
    BAR("C3")
    K(f"s_mul_i32 s{T0}, s{S_CH}, 24576")
    K(f"v_add_u32 v8, s{T0}, v6")
    K("v_lshlrev_b32 v9, 4, v3")
    K(f"v_add_u32 v9, s{T0}, v9")
    slots = [0, 8192, 49152, 49152+8192]
    for si, so in enumerate(slots):
        for qd in range(4): K(f"ds_read_b128 {v(128+16*si+4*qd,4)}, v8 offset:{so+qd*1024}")
        if si & 1: K("s_waitcnt lgkmcnt(0)")
    for si, so in enumerate(slots):
        for qd in range(4): K(f"ds_read_b128 {v(32+16*si+4*qd,4)}, v9 offset:{so+4096+32*qd}")
        if si == 1: K("s_waitcnt lgkmcnt(0)")
    for i in range(0, 16, 2):
        K(f"v_pk_add_f32 v[{128+i}:{129+i}], v[{128+i}:{129+i}], v[{144+i}:{145+i}]")
        K(f"v_pk_add_f32 v[{160+i}:{161+i}], v[{160+i}:{161+i}], v[{176+i}:{177+i}]")
        K(f"v_pk_add_f32 v[{128+i}:{129+i}], v[{128+i}:{129+i}], v[{160+i}:{161+i}]")
    for i in range(8): K(f"v_cvt_pk_bf16_f32 v{176+i}, v{128+2*i}, v{128+2*i+1}")
    K("s_waitcnt lgkmcnt(0)")
    for rt in range(2):
        acc = v(144+16*rt, 16)
        K(f"v_mfma_f32_32x32x16_bf16 {acc}, v[176:179], {v(PQ+8*rt,4)}, 0")
        K(f"v_mfma_f32_32x32x16_bf16 {acc}, v[180:183], {v(PQ+8*rt+4,4)}, {acc}")
    for i in range(0, 16, 2):
        K(f"v_pk_add_f32 v[{32+i}:{33+i}], v[{32+i}:{33+i}], v[{48+i}:{49+i}]")
        K(f"v_pk_add_f32 v[{64+i}:{65+i}], v[{64+i}:{65+i}], v[{80+i}:{81+i}]")
        K(f"v_pk_add_f32 v[{32+i}:{33+i}], v[{32+i}:{33+i}], v[{64+i}:{65+i}]")
    for rt in range(2):
        D = 48 + 2*rt
        for i in range(8):
            t = 56 + 2*(i & 1)
            K(f"v_lshlrev_b32 v{t}, 16, v{PQ+8*rt+i}")
            K(f"v_and_b32 v{t+1}, 0xffff0000, v{PQ+8*rt+i}")
            if i == 0: K(f"v_pk_mul_f32 v[{D}:{D+1}], v[{t}:{t+1}], v[{32+2*i}:{33+2*i}]")
            else:      K(f"v_pk_fma_f32 v[{D}:{D+1}], v[{t}:{t+1}], v[{32+2*i}:{33+2*i}], v[{D}:{D+1}]")
    for rt in range(2): K(f"v_add_f32 v{48+2*rt}, v{48+2*rt}, v{49+2*rt}")
    for rt in range(2): K(f"v_mov_b32 v{49+2*rt}, v{48+2*rt}")
    K("s_nop 1")
    for rt in range(2): K(f"v_permlane32_swap_b32 v{49+2*rt}, v{48+2*rt}")
    K("s_nop 1")
    for rt in range(2):
        K(f"v_add_f32 v{48+2*rt}, v{48+2*rt}, v{49+2*rt}")
        K(f"v_add_f32 v{48+2*rt}, s{T0+8}, v{48+2*rt}")
        K(f"v_rcp_f32 v{48+2*rt}, v{48+2*rt}")
    K("s_nop 0")
    for rt in range(2):
        acc = 144 + 16*rt
        for i in range(0, 16, 2):
            K(f"v_pk_mul_f32 v[{acc+i}:{acc+i+1}], v[{acc+i}:{acc+i+1}], v[{48+2*rt}:{49+2*rt}] op_sel_hi:[1,0]")
        for qq in range(2):
            o = 64 + 8*rt + 4*qq
            for j in range(4): K(f"v_cvt_pk_bf16_f32 v{o+j}, v{acc+8*qq+2*j}, v{acc+8*qq+2*j+1}")
    K("s_nop 1")
    for rt in range(2):
        for qq in range(2):
            o = 64 + 8*rt + 4*qq
            K(f"v_permlane32_swap_b32 v{o}, v{o+2}")
            K(f"v_permlane32_swap_b32 v{o+1}, v{o+3}")
    tile_write(O_TB, 64)
    K("s_waitcnt lgkmcnt(0)")
    BAR("S4")
    tile_store(O_TB, WS, f"s{S_OOFF}")
    ST(13)
    aaddr(0)
    baddr(BA, 16384)
    GACC = 128; GF = [32, 80]
    for i in range(32): K(f"v_mov_b32 v{GACC+i}, 0")
    K("s_waitcnt vmcnt(0)")
    BAR("A4"); BAR("B4")
    ST(14); STC(54)
    def reads2(st):
        r = []
        for ks in range(4):
            for rt in range(2): r.append(f"ds_read_b128 {v(st+12*ks+4*rt,4)}, v{AA[ks]} offset:{rt*4096}")
            for t in range(2):  r.append(f"ds_read_b64_tr_b16 {v(st+12*ks+8+2*t,2)}, v{BA} offset:{ks*2048+t*512}")
        return r
    def mfmas2(st):
        m = []
        for ks in range(4):
            for rt in range(2):
                acc = v(GACC+16*rt, 16)
                m.append(f"v_mfma_f32_32x32x16_bf16 {acc}, {v(st+12*ks+8,4)}, {v(st+12*ks+4*rt,4)}, {acc}")
        return m
    def adv2():
        K(f"s_add_u32 s{T0+4}, s{T0+4}, 1")
        K(f"s_cmp_eq_u32 s{T0+4}, {G2N}")
        K(f"s_cselect_b32 s{T0+5}, {(-(G2N-1)*G2STG) & 0xffffffff:#x}, s{T0+2}")
        K(f"s_cselect_b32 s{T0+4}, 0, s{T0+4}")
        for r in AA + [BA]: K(f"v_add_u32 v{r}, s{T0+5}, v{r}")
    K(f"s_mov_b32 s{T0+2}, {G2STG}")
    K(f"s_mov_b32 s{T0+4}, 0")
    K(f"s_mov_b32 s{T0+3}, 0")
    BAR("G2.0")
    for x in reads2(GF[0]): K(x)
    adv2()
    if ALIGN: K(".p2align 6")
    K.label("L_g2loop")
    for half in range(2):
        c_ = GF[half]; n_ = GF[half ^ 1]
        K("s_waitcnt lgkmcnt(0)")
        if half == 1:
            K(f"s_cmp_eq_u32 s{T0+3}, 14")
            K("s_cbranch_scc1 L_g2last")
        K("s_barrier")
        ms = mfmas2(c_); rs = reads2(n_)
        for i, m in enumerate(ms):
            K(m)
            for x in rs[2*i:2*i+2]: K(x)
        adv2()
        if half == 1:
            K(f"s_add_u32 s{T0+3}, s{T0+3}, 2")
            K("s_branch L_g2loop")
            K.label("L_g2last")
            for m in ms: K(m)
    bars["C"].append("G2.loop15")
    ST(15); STC(55)
    BAR("D5")
    K("s_nop 7")
    for rt in range(2):
        acc = GACC + 16*rt
        for qq in range(2):
            a = acc + 8*qq
            for j in range(4): K(f"v_permlane32_swap_b32 v{a+j}, v{a+4+j}")
    for rt in range(2):
        acc = GACC + 16*rt
        for qq in range(2):
            a = acc + 8*qq; r = XT + 8*rt + 4*qq
            for j in range(4):
                t = 56 + 2*(j & 1)
                K(f"v_lshlrev_b32 v{t}, 16, v{r+j}")
                K(f"v_and_b32 v{t+1}, 0xffff0000, v{r+j}")
                K(f"v_pk_add_f32 v[{a+2*j}:{a+2*j+1}], v[{a+2*j}:{a+2*j+1}], v[{t}:{t+1}]")
                acc_stats(qq == 0 and j == 0, rt, a+2*j)
                K(f"v_cvt_pk_bf16_f32 v{r+j}, v{a+2*j}, v{a+2*j+1}")
    K(f"s_cmp_eq_u32 s{S_LAYER}, 1")
    K("s_cbranch_scc1 L_final")
    stats_pre(S2, Q2, XA_SX)
    K("s_waitcnt lgkmcnt(0)")
    BAR("S5")
    stats_post(f"{WS_STX2:#x}")
    ST(16)
    K("s_waitcnt vmcnt(0)")
    BAR("A5"); BAR("B5")
    ST(17)
    stats_load(f"{WS_STX2:#x}", 64)
    K(f"s_mov_b32 s{S_LAYER}, 1")
    K(f"s_mov_b32 s{S_XAOFF}, {WS_XA[1]:#x}")
    K(f"s_mov_b32 s{S_STXA}, {WS_STXA[1]:#x}")
    K(f"s_mov_b32 s{S_KVPOFF}, {WS_KVP[1]:#x}")
    K(f"s_mov_b32 s{S_OOFF}, {WS_O[1]:#x}")
    K("s_waitcnt vmcnt(0)")
    stats_reduce(64)
    K("s_branch L_etail")
    K.label("L_final")
    tile_write(XA_TB, XT)
    K("s_waitcnt lgkmcnt(0)")
    K("s_barrier")
    tile_store(XA_TB, srd(S_OUT), "0", sc="")
    ST(18)
    if stamp:
        K("s_waitcnt vmcnt(0)")
        ST(19); STC(61)
        K(f"s_lshl_b32 s{T0}, s2, 3")
        K(f"s_add_u32 s{T0}, s{T0}, s{S_W}")
        K(f"s_lshl_b32 s{T0}, s{T0}, 8")
        K(f"s_add_u32 s{T0}, s{T0}, {200*MB:#x}")
        K("v_lshlrev_b32 v5, 2, v1")
        K(f"buffer_store_dword v{STV}, v5, {WS}, s{T0} offen")
    K("s_endpgm")

    cur[0] = "H"
    K.label("L_helper")
    SLW = T0+10
    K(f"s_sub_u32 s{SLW}, s{S_W}, 4")
    def master(ops):
        lab = K.newlabel("nm")
        K(f"s_cmp_eq_u32 s{S_W}, 4")
        K(f"s_cbranch_scc0 {lab}")
        K("v_cmp_eq_u32 vcc, 0, v1")
        K("s_and_saveexec_b64 s[90:91], vcc")
        K("v_mov_b32 v6, 1")
        for (op, kind, ph) in ops:
            base = S_ROWCNT if kind == "row" else S_COLCNT
            if op == "go":
                K(f"s_lshl_b32 s{T0}, s{S_RB}, 2")
                K(f"v_mov_b32 v5, s{T0}")
                K(f"s_lshl_b32 s{T0}, s{S_CT}, 2")
                K(f"s_add_u32 s{T0}, s{T0}, 64")
                K(f"v_mov_b32 v8, s{T0}")
                l = K.newlabel("go"); le = K.newlabel("goe")
                K(f"s_mov_b32 s{T0+1}, 0")
                K.label(l)
                K(f"buffer_load_dword v7, v5, {srd(S_DBG)}, 0 offen sc1")
                K(f"buffer_load_dword v9, v8, {srd(S_DBG)}, 0 offen sc1")
                K(f"s_add_u32 s{T0+1}, s{T0+1}, 1")
                K(f"s_cmp_gt_u32 s{T0+1}, 0x40000")
                K(f"s_cbranch_scc1 {le}")
                K("s_waitcnt vmcnt(0)")
                K("v_and_b32 v7, v7, v9")
                K("v_cmp_ne_u32 vcc, 1, v7")
                K(f"s_cbranch_vccnz {l}")
                K.label(le)
                continue
            if isinstance(ph, int): K(f"s_add_u32 s{T0}, s{base}, {ph*CNT_PH}")
            else:                   K(f"s_add_u32 s{T0}, s{base}, {ph}")
            K(f"v_mov_b32 v5, s{T0}")
            if op == "arrive":
                K(f"buffer_atomic_add v6, v5, {WS}, 0 offen sc1")
            else:
                l = K.newlabel("pw"); le = K.newlabel("pwe")
                K(f"s_mov_b32 s{T0+1}, 0")
                K.label(l)
                K(f"buffer_load_dword v7, v5, {WS}, 0 offen sc1")
                K(f"s_add_u32 s{T0+1}, s{T0+1}, 1")
                K(f"s_cmp_gt_u32 s{T0+1}, 0x40000")
                K(f"s_cbranch_scc1 {le}")
                K("s_waitcnt vmcnt(0)")
                K("v_cmp_ne_u32 vcc, 16, v7")
                K(f"s_cbranch_vccnz {l}")
                K.label(le)
        K("s_waitcnt vmcnt(0)")
        K("s_mov_b64 exec, s[90:91]")
        K.label(lab)
    K("s_waitcnt vmcnt(0)")
    STH(2)
    BAR("A0")
    STH(3)
    master([("go", None, None), ("arrive", "col", C_KVT), ("wait", "col", C_KVT)])
    K("v_lshrrev_b32 v5, 3, v1")
    K("v_and_b32 v6, 7, v1")
    K("v_lshrrev_b32 v7, 4, v1")
    VA = 16; VB = 32+96; VO = 20
    VB = 216
    K(f"s_lshl_b32 s{T0}, s{S_RB}, 18")
    K(f"s_lshl_b32 s{T0+1}, s{SLW}, 16")
    K(f"s_add_u32 s{T0}, s{T0}, s{T0+1}")
    for i in range(4):
        K(f"v_xor_b32 v8, {4*(i&1)}, v7")
        K("v_xor_b32 v8, v8, v6")
        K("v_lshlrev_b32 v8, 4, v8")
        K(f"v_add_u32 v9, {8*i}, v5")
        K("v_lshl_add_u32 v8, v9, 11, v8")
        K(f"v_add_u32 v{VA+i}, s{T0}, v8")
    K("v_bfe_u32 v8, v1, 4, 1")
    K("v_lshlrev_b32 v8, 2, v8")
    K("v_xor_b32 v8, v8, v6")
    K("v_lshlrev_b32 v8, 4, v8")
    K(f"s_movk_i32 s{T0}, 6144")
    K(f"v_mul_lo_u32 v9, v5, s{T0}")
    K("v_add_u32 v9, v9, v8")
    K(f"s_lshl_b32 s{T0+1}, s{S_CT}, 7")
    for i in range(6):
        K(f"s_mul_i32 s{T0+2}, s{SLW}, 6")
        K(f"s_add_u32 s{T0+2}, s{T0+2}, {i}")
        K(f"s_lshr_b32 s{T0+3}, s{T0+2}, 3")
        K(f"s_and_b32 s{T0+4}, s{T0+2}, 7")
        K(f"s_lshl_b32 s{T0+3}, s{T0+3}, 11")
        K(f"s_mul_i32 s{T0+4}, s{T0+4}, {8*6144}")
        K(f"s_add_u32 s{T0+3}, s{T0+3}, s{T0+4}")
        K(f"s_add_u32 s{T0+3}, s{T0+3}, s{T0+1}")
        K(f"v_add_u32 v{VB+i}, s{T0+3}, v9")
    K("v_lshl_add_u32 v9, v5, 11, v8")
    for i in range(2):
        K(f"s_lshl_b32 s{T0+2}, s{SLW}, 1")
        K(f"s_add_u32 s{T0+2}, s{T0+2}, {i}")
        K(f"s_lshl_b32 s{T0+2}, s{T0+2}, 14")
        K(f"s_add_u32 s{T0+2}, s{T0+2}, s{T0+1}")
        K(f"v_add_u32 v{VO+i}, s{T0+2}, v9")
    SLA, SLB1, SLB2 = T0+11, T0+12, T0+13
    K(f"s_lshl_b32 s{SLA}, s{SLW}, 12")
    K(f"s_mul_i32 s{SLB1}, s{SLW}, 6144")
    K(f"s_add_u32 s{SLB1}, s{SLB1}, 16384")
    K(f"s_lshl_b32 s{SLB2}, s{SLW}, 11")
    K(f"s_add_u32 s{SLB2}, s{SLB2}, 16384")
    SKA, SKB = T0+14, T0+15
    def issueA(buf):
        K(f"s_add_u32 m0, s{SLA}, {buf}")
        for i in range(4):
            K("s_nop 0")
            K(f"buffer_load_dwordx4 v{VA+i}, {WS}, s{SKA} offen sc1 lds")
            if i < 3: K("s_add_u32 m0, m0, 1024")
        K(f"s_add_u32 s{SKA}, s{SKA}, 128")
    def issueW(buf):
        K(f"s_add_u32 m0, s{SLB1}, {buf}")
        for i in range(6):
            K("s_nop 0")
            K(f"buffer_load_dwordx4 v{VB+i}, {srd(S_WQKV)}, s{SKB} offen lds")
            if i < 5: K("s_add_u32 m0, m0, 1024")
        K(f"s_add_u32 s{SKB}, s{SKB}, {64*6144}")
    def issueO(buf):
        K(f"s_add_u32 m0, s{SLB2}, {buf}")
        for i in range(2):
            K("s_nop 0")
            K(f"buffer_load_dwordx4 v{VO+i}, {srd(S_WO)}, s{SKB} offen lds")
            if i < 1: K("s_add_u32 m0, m0, 1024")
        K(f"s_add_u32 s{SKB}, s{SKB}, {64*2048}")
    g1buf = lambda s_: ((s_ + 2) % G1N) * G1STG
    def extra_loads():
        K("v_lshrrev_b32 v176, 1, v1")
        K("v_and_b32 v177, 1, v1")
        K("v_lshlrev_b32 v178, 11, v176")
        K("v_lshl_add_u32 v178, v177, 6, v178")
        K(f"s_lshl_b32 s{T0}, s{S_RB}, 18")
        K(f"s_lshl_b32 s{T0+1}, s{T0+10}, 16")
        K(f"s_add_u32 s{T0}, s{T0}, s{T0+1}")
        K(f"s_lshl_b32 s{T0+1}, s{S_CT}, 7")
        K(f"s_add_u32 s{T0}, s{T0}, s{T0+1}")
        for i in range(4): K(f"buffer_load_dwordx4 {v(128+4*i,4)}, v178, {srd(S_Q)}, s{T0} offen offset:{16*i}")
        K("v_lshrrev_b32 v179, 3, v1")
        K("v_and_b32 v180, 7, v1")
        K(f"s_movk_i32 s{T0+5}, 6144")
        K("v_lshlrev_b32 v179, 3, v179")
        K(f"v_mul_lo_u32 v179, v179, s{T0+5}")
        K("v_lshl_add_u32 v179, v180, 4, v179")
        K(f"s_mul_i32 s{T0+6}, s{S_RB}, {64*6144}")
        K(f"s_lshl_b32 s{T0+7}, s{S_CT}, 7")
        K(f"s_add_u32 s{T0+6}, s{T0+6}, s{T0+7}")
        K(f"s_sub_u32 s{T0+7}, s{T0+10}, 1")
        K(f"s_max_i32 s{T0+7}, s{T0+7}, 0")
        K(f"s_lshl_b32 s{T0+7}, s{T0+7}, 11")
        K(f"s_add_u32 s{T0+6}, s{T0+6}, s{T0+7}")
        for i in range(8):
            K(f"buffer_load_dwordx4 {v(144+4*i,4)}, v179, {srd(S_WQKV)}, s{T0+6} offen")
            if i < 7: K(f"s_add_u32 s{T0+6}, s{T0+6}, 6144")
        K("v_lshrrev_b32 v181, 3, v1")
        K("v_lshlrev_b32 v181, 11, v181")
        K("v_lshl_add_u32 v181, v180, 4, v181")
        K(f"s_lshl_b32 s{T0+6}, s{S_RB}, 17")
        K(f"s_lshl_b32 s{T0+7}, s{T0+10}, 15")
        K(f"s_add_u32 s{T0+6}, s{T0+6}, s{T0+7}")
        K(f"s_lshl_b32 s{T0+7}, s{S_CT}, 7")
        K(f"s_add_u32 s{T0+6}, s{T0+6}, s{T0+7}")
        K(f"buffer_load_dwordx4 v[208:211], v181, {srd(S_WO)}, s{T0+6} offen")
        K(f"s_add_u32 s{T0+6}, s{T0+6}, 16384")
        K(f"buffer_load_dwordx4 v[212:215], v181, {srd(S_WO)}, s{T0+6} offen")
        K(f"s_mov_b32 s{SKB}, 0")
        issueW(g1buf(0)); issueW(g1buf(1))
    STH(7)
    BAR("B0")
    BAR("B0b")
    STH(8)
    extra_loads()
    K("s_waitcnt vmcnt(22)")
    for i in range(16):
        t = 56 + 2*(i & 1)
        K(f"v_lshlrev_b32 v{t}, 16, v{128+i}")
        K(f"v_and_b32 v{t+1}, 0xffff0000, v{128+i}")
        acc_stats(i == 0, 0, t)
    K(f"v_add_f32 v44, v{S2[0]}, v{S2[0]+1}")
    K(f"v_add_f32 v45, v{Q2[0]}, v{Q2[0]+1}")
    K("s_nop 1")
    K("v_add_f32_dpp v44, v44, v44 quad_perm:[1,0,3,2] row_mask:0xf bank_mask:0xf")
    K("v_add_f32_dpp v45, v45, v45 quad_perm:[1,0,3,2] row_mask:0xf bank_mask:0xf")
    K(f"s_lshl_b32 s{T0}, s{S_RB}, 4")
    K(f"s_add_u32 s{T0}, s{T0}, s{S_CT}")
    K(f"s_lshl_b32 s{T0}, s{T0}, 10")
    K(f"s_lshl_b32 s{T0+1}, s{SLW}, 8")
    K(f"s_add_u32 s{T0}, s{T0}, s{T0+1}")
    K(f"s_add_u32 s{T0}, s{T0}, {WS_STQ:#x}")
    K("v_lshlrev_b32 v46, 3, v176")
    K("s_waitcnt vmcnt(14)")
    K("v_cmp_eq_u32 vcc, 0, v177")
    K("s_and_saveexec_b64 s[90:91], vcc")
    K(f"buffer_store_dwordx2 v[44:45], v46, {WS}, s{T0} offen sc1")
    K("s_mov_b64 exec, s[90:91]")
    K(f"s_cmp_eq_u32 s{SLW}, 0")
    K("s_cbranch_scc1 L_nocs")
    K(f"s_sub_u32 s{T0+8}, s{SLW}, 1")
    for dw in range(4):
        for i in range(8):
            src_ = 144 + 4*i + dw
            t = 190 + 2*dw if i == 0 else 186 + 2*(i & 1)
            K(f"v_lshlrev_b32 v{t}, 16, v{src_}")
            K(f"v_and_b32 v{t+1}, 0xffff0000, v{src_}")
            if i: K(f"v_pk_add_f32 v[{190+2*dw}:{191+2*dw}], v[{190+2*dw}:{191+2*dw}], v[{t}:{t+1}]")
    K("s_nop 1")
    for c in range(8): K(f"v_add_f32_dpp v{190+c}, v{190+c}, v{190+c} row_ror:8 row_mask:0xf bank_mask:0xf")
    for c in range(8): K(f"v_mov_b32 v{200+c}, v{190+c}")
    K("s_nop 1")
    for c in range(8): K(f"v_permlane16_swap_b32 v{200+c}, v{190+c}")
    K("s_nop 1")
    for c in range(8): K(f"v_add_f32 v{190+c}, v{190+c}, v{200+c}")
    for c in range(8): K(f"v_mov_b32 v{200+c}, v{190+c}")
    K("s_nop 1")
    for c in range(8): K(f"v_permlane32_swap_b32 v{200+c}, v{190+c}")
    K("s_nop 1")
    for c in range(8): K(f"v_add_f32 v{190+c}, v{190+c}, v{200+c}")
    K(f"s_lshl_b32 s{T0+6}, s{S_CT}, 4")
    K(f"s_add_u32 s{T0+6}, s{T0+6}, s{S_RB}")
    K(f"s_mul_i32 s{T0+6}, s{T0+6}, 768")
    K(f"s_lshl_b32 s{T0+5}, s{T0+8}, 8")
    K(f"s_add_u32 s{T0+6}, s{T0+6}, s{T0+5}")
    K(f"s_add_u32 s{T0+6}, s{T0+6}, {WS_CSP:#x}")
    K("v_lshlrev_b32 v10, 5, v1")
    K("v_cmp_gt_u32 vcc, 8, v1")
    K("s_and_saveexec_b64 s[90:91], vcc")
    K(f"buffer_store_dwordx4 v[190:193], v10, {WS}, s{T0+6} offen sc1")
    K(f"buffer_store_dwordx4 v[194:197], v10, {WS}, s{T0+6} offen offset:16 sc1")
    K("s_mov_b64 exec, s[90:91]")
    K.label("L_nocs")
    STH(4)
    K("s_waitcnt vmcnt(0)")
    BAR("A1")
    STH(9)
    master([("arrive", "col", C_Y), ("arrive", "row", R_QST), ("wait", "col", C_Y), ("wait", "row", R_QST)])
    STH(10)
    issueW(g1buf(2))
    BAR("B1")
    K("v_lshrrev_b32 v5, 4, v1")
    K("v_lshlrev_b32 v5, 12, v5")
    K("v_and_b32 v6, 15, v1")
    K("v_lshl_add_u32 v5, v6, 4, v5")
    K(f"s_lshl_b32 s{T0}, s{S_CT}, 18")
    K(f"s_lshl_b32 s{T0+1}, s{S_RB}, 8")
    K(f"s_add_u32 s{T0}, s{T0}, s{T0+1}")
    K(f"s_lshl_b32 s{T0+1}, s{SLW}, 16")
    K(f"s_add_u32 s{T0}, s{T0}, s{T0+1}")
    K(f"s_add_u32 s{T0}, s{T0}, {WS_YT:#x}")
    K(f"s_lshl_b32 m0, s{SLW}, 12")
    for i in range(4):
        K("s_nop 0")
        K(f"buffer_load_dwordx4 v5, {WS}, s{T0} offen sc1 lds")
        K(f"s_add_u32 s{T0}, s{T0}, 16384")
        if i < 3: K("s_add_u32 m0, m0, 1024")
    K("s_waitcnt vmcnt(0)")
    BAR("C1")
    K.label("L_hlayer")
    BAR("S2")
    tile_store(XA_TB, WS, f"s{S_XAOFF}")
    K("s_waitcnt vmcnt(0)")
    BAR("A2")
    SPH = T0+17
    K(f"s_mul_i32 s{SPH}, s{S_LAYER}, {3*CNT_PH}")
    K(f"s_add_u32 s{SPH+1}, s{SPH}, {R_XA0*CNT_PH}")
    master([("arrive", "row", f"s{SPH+1}"), ("wait", "row", f"s{SPH+1}")])
    BAR("B2")
    K(f"s_mov_b32 s{SKA}, s{S_XAOFF}")
    for s_ in range(3): issueA(g1buf(s_))
    K("s_waitcnt vmcnt(8)")
    BAR("G1.0")
    for i in range(15):
        if i + 3 <= 15:
            issueA(g1buf(i+3)); issueW(g1buf(i+3))
        n = 14 if i == 0 else (20 if i <= 12 else (10 if i == 13 else 0))
        K(f"s_waitcnt vmcnt({n})")
        K("s_barrier")
    bars["H"].append("G1.loop15")
    BAR("X3")
    BAR("A3")
    K(f"s_add_u32 s{SPH+1}, s{S_LAYER}, {C_KVP0}")
    K(f"s_mul_i32 s{SPH+1}, s{SPH+1}, {CNT_PH}")
    master([("arrive", "col", f"s{SPH+1}"), ("wait", "col", f"s{SPH+1}")])
    BAR("B3")
    m_load_sum()
    K(f"s_mov_b32 s{SKB}, 0")
    for j in range(G2N-1): issueO(j*G2STG)
    BAR("C3")
    BAR("S4")
    tile_store(O_TB, WS, f"s{S_OOFF}")
    K("s_waitcnt vmcnt(0)")
    BAR("A4")
    K(f"s_add_u32 s{SPH+1}, s{SPH}, {R_O0*CNT_PH}")
    master([("arrive", "row", f"s{SPH+1}"), ("wait", "row", f"s{SPH+1}")])
    BAR("B4")
    K(f"s_mov_b32 s{SKA}, s{S_OOFF}")
    for j in range(G2N-1): issueA(j*G2STG)
    K("s_waitcnt vmcnt(16)")
    BAR("G2.0")
    waits = [18, 20, 22, 24, 24, 24, 24, 24, 24, 24, 24, 18, 12, 6, 0]
    for i in range(15):
        if i + 5 <= 15:
            b = ((i+5) % G2N) * G2STG
            issueA(b); issueO(b)
        K(f"s_waitcnt vmcnt({waits[i]})")
        K("s_barrier")
    bars["H"].append("G2.loop15")
    BAR("D5")
    K(f"s_cmp_eq_u32 s{S_LAYER}, 1")
    K("s_cbranch_scc1 L_hfinal")
    BAR("S5")
    BAR("A5")
    master([("arrive", "row", R_X2), ("wait", "row", R_X2)])
    K(f"s_mov_b32 s{SKB}, 0")
    for s_ in range(3): issueW(g1buf(s_))
    BAR("B5")
    K(f"s_mov_b32 s{S_LAYER}, 1")
    K(f"s_mov_b32 s{S_XAOFF}, {WS_XA[1]:#x}")
    K(f"s_mov_b32 s{S_KVPOFF}, {WS_KVP[1]:#x}")
    K(f"s_mov_b32 s{S_OOFF}, {WS_O[1]:#x}")
    K("s_branch L_hlayer")
    K.label("L_hfinal")
    K("s_barrier")
    tile_store(XA_TB, srd(S_OUT), "0", sc="")
    if stamp:
        K(f"s_lshl_b32 s{T0}, s2, 3")
        K(f"s_add_u32 s{T0}, s{T0}, s{S_W}")
        K(f"s_lshl_b32 s{T0}, s{T0}, 8")
        K(f"s_add_u32 s{T0}, s{T0}, {200*MB:#x}")
        K("v_lshlrev_b32 v5, 2, v1")
        K(f"buffer_store_dword v{STV}, v5, {WS}, s{T0} offen")
    K.label("L_done")
    K("s_endpgm")
    assert bars["C"] == bars["H"], (bars["C"], bars["H"])
    return K

if __name__ == "__main__":
    stamp = len(sys.argv) > 2 and sys.argv[2] == "stamp"
    K = gen(stamp=stamp)
    hdr = HEADER + f"; @launch grid=(256,1,1) block=(512,1,1) lds={LDS_TOTAL}\n"
    txt = hdr + '.amdgcn_target "amdgcn-amd-amdhsa--gfx950"\n.text\n' + K.text() + '.section .rodata,"a"\n.p2align 6\n' + K.desc()
    open(sys.argv[1], "w").write(txt)
    print(len(txt), "bytes")
```

```python
import sys
from fw import *
MB = 1 << 20
WS_KVT = 0; WS_YT = 4*MB; WS_XA = [8*MB, 12*MB]; WS_O = [16*MB, 20*MB]
WS_KVP = [24*MB, 26*MB]; KVP_STRIDE = 2304
WS_STQ = 30*MB; WS_STXA = [31*MB, 33*MB]; WS_STX2 = 32*MB
WS_CSP = 34*MB; WS_ROWC = 35*MB; WS_COLC = 35*MB + 65536
SZ4 = 4*MB
R_QST, R_XA0, R_O0, R_X2, R_XA1, R_O1 = range(6)
C_KVT, C_Y, C_KVP0, C_KVP1 = range(4)
CNT_PH = 4096
G1STG = 40960; G1N = 4
G2STG = 24576; G2N = 6
LDS_TOTAL = 163840
HE = 0; HO = 4160; UR = 8320; WP = 12928
KVSTAGE = 65536
XA_TB = 2*G1STG; XA_SX = 57344; XA_SY = 59392
O_TB = 0; O_SY = 147456
X3B = 122880; RSTAT = 139264
X2_SX = 57344
OUT_TB = 81920

S_WS = 8; S_K = 12; S_V = 16; S_Q = 20; S_H = 24; S_WQKV = 28; S_WO = 32; S_OUT = 36; S_MISC = 40; S_DBG = 44
S_RB = 48; S_CT = 49; S_W = 50; S_RH = 51; S_CH = 52; S_LAYER = 53
S_XAOFF = 54; S_STXA = 55; S_KVPOFF = 56; S_OOFF = 57; S_ROWCNT = 58; S_COLCNT = 59
T0 = 60
XT = 224; YT = 240
WS = f"s[{S_WS}:{S_WS+3}]"
STV = 31
VM = [16, 18]; VR = [20, 22]; VCS = [17, 19, 21]
VTW = 26
def srd(b): return f"s[{b}:{b+3}]"

MAPB = False
def gen(stamp=False):
    K = Kern("interleave_layers__ssm_conv_h3__linear_attn_block__prompt_kernel", 256, 512, LDS_TOTAL, vgpr=256, sgpr=100)
    bars = {"C": [], "H": []}
    cur = ["C"]
    def BAR(tag, both=False):
        if both: bars["C"].append(tag); bars["H"].append(tag)
        else: bars[cur[0]].append(tag)
        K("s_barrier")
    def ST(i):
        if stamp and cur[0] == "C":
            K("s_memrealtime s[88:89]")
            K(f"s_mul_i32 s92, s{S_LAYER}, 24")
            K(f"s_add_u32 m0, s92, {i}")
            K("s_waitcnt lgkmcnt(0)")
            K(f"v_writelane_b32 v{STV}, s88, m0")
    def STH(i):
        if stamp:
            K("s_memrealtime s[88:89]")
            K("s_waitcnt lgkmcnt(0)")
            K(f"v_writelane_b32 v{STV}, s88, {i}")
    def STC(i):
        if stamp:
            K("s_memtime s[88:89]")
            K("s_waitcnt lgkmcnt(0)")
            K(f"v_writelane_b32 v{STV}, s88, {i}")
    def ALIGN(): K(".p2align 6")
    K("s_cmp_ge_u32 s2, 256")
    K("s_cbranch_scc1 L_done")
    K.ldptr(4, "k"); K.ldptr(6, "v")
    for (r, n) in ((74, "shift_k"), (70, "ws"), (60, "q"), (62, "ssm_k"), (64, "wqkv"), (66, "wo"), (68, "out"), (72, "dbg"), (76, "ssm_D")):
        K.ldptr(r, n)
    K("v_and_b32 v1, 63, v0")
    K("v_lshrrev_b32 v5, 6, v0")
    K("v_and_b32 v2, 31, v1")
    K("v_lshrrev_b32 v3, 5, v1")
    K(f"v_readfirstlane_b32 s{S_W}, v5")
    K("s_and_b32 s78, s2, 7\ns_lshr_b32 s79, s2, 3")
    if MAPB:
        K("s_and_b32 s80, s78, 3\ns_lshl_b32 s80, s80, 2\ns_and_b32 s81, s79, 3")
        K(f"s_add_u32 s{S_RB}, s80, s81")
        K("s_lshr_b32 s80, s78, 2\ns_lshl_b32 s80, s80, 3\ns_lshr_b32 s81, s79, 2")
        K(f"s_add_u32 s{S_CT}, s80, s81")
    else:
        K("s_and_b32 s80, s78, 1\ns_lshl_b32 s80, s80, 3\ns_and_b32 s81, s79, 7")
        K(f"s_add_u32 s{S_RB}, s80, s81")
        K("s_lshr_b32 s80, s78, 1\ns_lshl_b32 s80, s80, 2\ns_lshr_b32 s81, s79, 3")
        K(f"s_add_u32 s{S_CT}, s80, s81")
    K("v_and_b32 v32, 7, v0")
    K("v_lshrrev_b32 v33, 3, v0")
    K(f"s_lshl_b32 s78, s{S_RB}, 18")
    K(f"s_lshl_b32 s79, s{S_CT}, 7")
    K("s_add_u32 s78, s78, s79")
    K("s_sub_u32 s78, s78, 6144")
    K("v_lshlrev_b32 v34, 12, v33")
    K("v_lshl_add_u32 v34, v32, 4, v34")
    K("v_add_u32 v34, s78, v34")
    for j in range(1, 5): K(f"v_add_u32 v{34+j}, {2048*j}, v34")
    K(f"s_lshl_b32 s79, s{S_CT}, 9")
    K("v_lshlrev_b32 v39, 6, v32")
    K("v_add_u32 v39, s79, v39")
    K("s_waitcnt lgkmcnt(0)")
    K.srd(S_K, 4, 0, SZ4); K.srd(S_V, 6, 0, SZ4); K.srd(S_MISC, 74, 0, 8192)
    for j in range(5): K(f"buffer_load_dwordx4 {v(40+4*j,4)}, v{34+j}, {srd(S_K)}, 0 offen")
    for i in range(2): K(f"buffer_load_dwordx4 {v(60+4*i,4)}, v{37+i}, {srd(S_V)}, 0 offen")
    for i in range(4): K(f"buffer_load_dwordx4 {v(68+4*i,4)}, v39, {srd(S_MISC)}, 0 offen offset:{16*i}")
    K.srd(S_WS, 70, 0, 256*MB)
    K.srd(S_Q, 60, 0, SZ4); K.srd(S_H, 62, 0, SZ4)
    K.srd(S_WQKV, 64, 0, 6*MB); K.srd(S_WO, 66, 0, 2*MB); K.srd(S_OUT, 68, 0, SZ4)
    K.srd(S_DBG, 72, 0, 256); K.srd(84, 76, 0, 2048)
    K(f"s_and_b32 s{S_RH}, s{S_W}, 1")
    K(f"s_bfe_u32 s{S_CH}, s{S_W}, 0x10001")
    K(f"s_mov_b32 s{S_LAYER}, 0")
    K(f"s_lshl_b32 s78, s{S_RB}, 8")
    K(f"s_add_u32 s{S_ROWCNT}, s78, {WS_ROWC:#x}")
    K(f"s_lshl_b32 s78, s{S_CT}, 8")
    K(f"s_add_u32 s{S_COLCNT}, s78, {WS_COLC:#x}")
    K(f"s_mov_b32 s{S_XAOFF}, {WS_XA[0]:#x}")
    K(f"s_mov_b32 s{S_STXA}, {WS_STXA[0]:#x}")
    K(f"s_mov_b32 s{S_KVPOFF}, {WS_KVP[0]:#x}")
    K(f"s_mov_b32 s{S_OOFF}, {WS_O[0]:#x}")
    if stamp: K(f"v_mov_b32 v{STV}, 0")
    ST(0); STC(60)
    K(f"s_cmp_eq_u32 s{S_W}, 7")
    K("s_cbranch_scc0 L_noinit")
    K("v_cmp_gt_u32 vcc, 8, v1")
    K("s_and_saveexec_b64 s[90:91], vcc")
    K("v_lshlrev_b32 v5, 12, v1")
    K("v_mov_b32 v6, 0")
    K("v_mov_b32 v7, 1")
    K(f"s_cmp_eq_u32 s{S_CT}, 0")
    K("s_cbranch_scc0 L_init2")
    K(f"buffer_store_dword v6, v5, {WS}, s{S_ROWCNT} offen sc1")
    K("s_waitcnt vmcnt(0)")
    K(f"s_lshl_b32 s{T0}, s{S_RB}, 2")
    K(f"v_mov_b32 v8, s{T0}")
    K(f"buffer_store_dword v7, v8, {srd(S_DBG)}, 0 offen sc1")
    K.label("L_init2")
    K(f"s_cmp_eq_u32 s{S_RB}, 0")
    K("s_cbranch_scc0 L_init3")
    K(f"buffer_store_dword v6, v5, {WS}, s{S_COLCNT} offen sc1")
    K("s_waitcnt vmcnt(0)")
    K(f"s_lshl_b32 s{T0}, s{S_CT}, 2")
    K(f"s_add_u32 s{T0}, s{T0}, 64")
    K(f"v_mov_b32 v8, s{T0}")
    K(f"buffer_store_dword v7, v8, {srd(S_DBG)}, 0 offen sc1")
    K.label("L_init3")
    K("s_mov_b64 exec, s[90:91]")
    K.label("L_noinit")
    K("v_bfe_u32 v8, v2, 1, 3")
    K(f"s_lshl_b32 s{T0}, s{S_CH}, 2")
    K(f"v_add_u32 v9, s{T0}, v3")
    K("v_xor_b32 v8, v8, v9")
    K("v_lshlrev_b32 v8, 4, v8")
    K("v_lshl_add_u32 v8, v2, 7, v8")
    K(f"s_lshl_b32 s{T0}, s{S_RH}, 13")
    K(f"v_add_u32 v{VTW}, s{T0}, v8")
    K("v_sub_u32 v5, 63, v33")
    K("v_lshlrev_b32 v6, 2, v32")
    K("v_xor_b32 v5, v5, v6")
    K("v_lshlrev_b32 v5, 2, v5")
    K("v_lshl_add_u32 v5, v32, 11, v5")
    K(f"v_add_u32 v5, {KVSTAGE}, v5")
    K("s_waitcnt vmcnt(0)")
    STH(1)
    KU, SU, VU, AC = 96, 102, 106, 108
    for dw in range(4):
        b = 96 + 24*(dw & 1)
        for j in range(5):
            K(f"v_lshlrev_b32 v{b+2*j}, 16, v{40+4*j+dw}")
            K(f"v_and_b32 v{b+2*j+1}, 0xffff0000, v{40+4*j+dw}")
        for i in range(2):
            K(f"v_lshlrev_b32 v{b+10+2*i}, 16, v{60+4*i+dw}")
            K(f"v_and_b32 v{b+10+2*i+1}, 0xffff0000, v{60+4*i+dw}")
        t = b + 14
        K(f"v_lshlrev_b32 v{t+0}, 16, v{68+4*dw}")        ; K(f"v_lshlrev_b32 v{t+1}, 16, v{68+4*dw+2}")
        K(f"v_and_b32 v{t+2}, 0xffff0000, v{68+4*dw}")    ; K(f"v_and_b32 v{t+3}, 0xffff0000, v{68+4*dw+2}")
        K(f"v_lshlrev_b32 v{t+4}, 16, v{68+4*dw+1}")      ; K(f"v_lshlrev_b32 v{t+5}, 16, v{68+4*dw+3}")
        K(f"v_and_b32 v{t+6}, 0xffff0000, v{68+4*dw+1}")  ; K(f"v_and_b32 v{t+7}, 0xffff0000, v{68+4*dw+3}")
        a = 144 + 4*(dw & 1)
        for i in range(2): K(f"v_pk_mul_f32 v[{a+2*i}:{a+2*i+1}], v[{b+2*i}:{b+2*i+1}], v[{t+6}:{t+7}]")
        for tap in (2, 1, 0):
            for i in range(2):
                kk = b + 2*(3+i-tap)
                K(f"v_pk_fma_f32 v[{a+2*i}:{a+2*i+1}], v[{kk}:{kk+1}], v[{t+2*tap}:{t+2*tap+1}], v[{a+2*i}:{a+2*i+1}]")
        for i in range(2): K(f"v_pk_mul_f32 v[{a+2*i}:{a+2*i+1}], v[{a+2*i}:{a+2*i+1}], v[{b+10+2*i}:{b+10+2*i+1}]")
        o = 152 + 2*(dw & 1)
        K(f"v_cvt_pk_bf16_f32 v{o}, v{a+2}, v{a+0}")
        K(f"v_cvt_pk_bf16_f32 v{o+1}, v{a+3}, v{a+1}")
        K(f"ds_write_b32 v5, v{o} offset:{(2*dw)*256}")
        K(f"ds_write_b32 v5, v{o+1} offset:{(2*dw+1)*256}")
    K("s_waitcnt lgkmcnt(0)")
    BAR("S0", both=True)
    K("v_lshrrev_b32 v6, 4, v1")
    K("v_and_b32 v7, 15, v1")
    K(f"s_lshl_b32 s{T0}, s{S_W}, 3")
    K(f"v_add_u32 v6, s{T0}, v6")
    K(f"v_mov_b32 v8, s{S_W}")
    K("v_xor_b32 v8, v8, v7")
    K("v_lshlrev_b32 v8, 4, v8")
    K("v_lshl_add_u32 v8, v6, 8, v8")
    K(f"v_add_u32 v8, {KVSTAGE}, v8")
    K("ds_read_b128 v[40:43], v8")
    K("ds_read_b128 v[44:47], v8 offset:1024")
    K(f"s_lshl_b32 s{T0+1}, s{S_CT}, 18")
    K(f"s_add_u32 s{T0+2}, s{S_RB}, 1")
    K(f"s_lshl_b32 s{T0+2}, s{T0+2}, 8")
    K(f"s_sub_u32 s{T0+2}, 4096, s{T0+2}")
    K(f"s_add_u32 s{T0+1}, s{T0+1}, s{T0+2}")
    K(f"s_add_u32 s{T0+2}, s{T0+1}, 16384")
    K("v_lshlrev_b32 v9, 12, v6")
    K("v_lshl_add_u32 v9, v7, 4, v9")
    K("s_waitcnt lgkmcnt(1)")
    K(f"buffer_store_dwordx4 v[40:43], v9, {WS}, s{T0+1} offen sc1")
    K("s_waitcnt lgkmcnt(0)")
    K(f"buffer_store_dwordx4 v[44:47], v9, {WS}, s{T0+2} offen sc1")
    K(f"s_cmp_ge_u32 s{S_W}, 4")
    K("s_cbranch_scc1 L_helper")

    def tile_write(TB, regs):
        K(f"v_add_u32 v5, {TB}, v{VTW}")
        K("v_xor_b32 v6, 32, v5")
        for rt in range(2):
            for qq in range(2):
                K(f"ds_write_b128 v{5+qq}, {v(regs+8*rt+4*qq,4)} offset:{rt*4096}")
    def stats_to_lds(S2, Q2, SX):
        T = 40
        for rt in range(2):
            K(f"v_add_f32 v{T+2*rt}, v{S2[rt]}, v{S2[rt]+1}")
            K(f"v_add_f32 v{T+2*rt+1}, v{Q2[rt]}, v{Q2[rt]+1}")
        for j in range(4): K(f"v_mov_b32 v{T+4+j}, v{T+j}")
        K(f"s_lshl_b32 s{T0}, s{S_RH}, 9")
        K(f"s_lshl_b32 s{T0+1}, s{S_CH}, 10")
        for j in range(4): K(f"v_permlane32_swap_b32 v{T+4+j}, v{T+j}")
        K("v_cmp_eq_u32 vcc, 1, v3")
        K(f"s_add_u32 s{T0}, s{T0}, s{T0+1}")
        K(f"s_add_u32 s{T0}, s{T0}, {SX}")
        for j in range(4): K(f"v_add_f32 v{T+j}, v{T+j}, v{T+4+j}")
        K(f"v_cndmask_b32 v{T+8}, v{T}, v{T+2}, vcc")
        K(f"v_cndmask_b32 v{T+9}, v{T+1}, v{T+3}, vcc")
        K("v_lshlrev_b32 v7, 3, v1")
        K(f"v_add_u32 v7, s{T0}, v7")
        K(f"ds_write_b64 v7, v[{T+8}:{T+9}]")
    def stats_load(stoff, R):
        K(f"s_lshl_b32 s{T0}, s{S_RB}, 14")
        K(f"s_lshl_b32 s{T0+1}, s{S_RH}, 9")
        K(f"s_add_u32 s{T0}, s{T0}, s{T0+1}")
        K(f"s_add_u32 s{T0}, s{T0}, {stoff}")
        K("v_lshlrev_b32 v5, 13, v3")
        K("v_lshl_add_u32 v5, v2, 3, v5")
        for j in range(8):
            for rt in range(2):
                K(f"buffer_load_dwordx2 v[{R+16*rt+2*j}:{R+16*rt+2*j+1}], v5, {WS}, s{T0} offen offset:{rt*256} sc1")
            if j < 7: K(f"s_add_u32 s{T0}, s{T0}, 1024")
    def stats_reduce(R):
        for j in range(1, 8):
            for rt in range(2):
                b = R + 16*rt
                K(f"v_pk_add_f32 v[{b}:{b+1}], v[{b}:{b+1}], v[{b+2*j}:{b+2*j+1}]")
        for rt in range(2):
            b = R + 16*rt
            K(f"v_mov_b32 v{b+2}, v{b}")
            K(f"v_mov_b32 v{b+3}, v{b+1}")
        K(f"s_mov_b32 s{T0}, 0x3a800000")
        K(f"s_mov_b32 s{T0+1}, 0x3727c5ac")
        for rt in range(2):
            b = R + 16*rt
            K(f"v_permlane32_swap_b32 v{b+2}, v{b}")
            K(f"v_permlane32_swap_b32 v{b+3}, v{b+1}")
        K("s_nop 0")
        for rt in range(2):
            b = R + 16*rt
            K(f"v_pk_add_f32 v[{b}:{b+1}], v[{b}:{b+1}], v[{b+2}:{b+3}]")
        for rt in range(2):
            b = R + 16*rt
            K(f"v_mul_f32 v{VM[rt]}, s{T0}, v{b}")
            K(f"v_mul_f32 v{b+1}, s{T0}, v{b+1}")
        for rt in range(2):
            b = R + 16*rt
            K(f"v_fma_f32 v{b+1}, -v{VM[rt]}, v{VM[rt]}, v{b+1}")
            K(f"v_max_f32 v{b+1}, 0, v{b+1}")
            K(f"v_add_f32 v{b+1}, s{T0+1}, v{b+1}")
            K(f"v_rsq_f32 v{VR[rt]}, v{b+1}")
        K("s_nop 0")
    S2 = [48, 52]; Q2 = [50, 54]
    def acc_stats(first, rt, P):
        if first:
            K(f"v_pk_mul_f32 v[{Q2[rt]}:{Q2[rt]+1}], v[{P}:{P+1}], v[{P}:{P+1}]")
            K(f"v_mov_b32 v{S2[rt]}, v{P}")
            K(f"v_mov_b32 v{S2[rt]+1}, v{P+1}")
        else:
            K(f"v_pk_fma_f32 v[{Q2[rt]}:{Q2[rt]+1}], v[{P}:{P+1}], v[{P}:{P+1}], v[{Q2[rt]}:{Q2[rt]+1}]")
            K(f"v_pk_add_f32 v[{S2[rt]}:{S2[rt]+1}], v[{S2[rt]}:{S2[rt]+1}], v[{P}:{P+1}]")
    def e_phase():
        n = 0
        for i in range(8):
            for rt in range(2):
                t = 56 + 6*(n % 4); n += 1
                x = XT + 8*rt + i; y = YT + 8*rt + i
                K(f"v_lshlrev_b32 v{t}, 16, v{x}")
                K(f"v_and_b32 v{t+1}, 0xffff0000, v{x}")
                K(f"v_lshlrev_b32 v{t+2}, 16, v{y}")
                K(f"v_and_b32 v{t+3}, 0xffff0000, v{y}")
                K(f"v_pk_add_f32 v[{t+4}:{t+5}], v[{t}:{t+1}], v[{VM[rt]}:{VM[rt]+1}] op_sel_hi:[1,0] neg_lo:[0,1] neg_hi:[0,1]")
                K(f"v_pk_mul_f32 v[{t+4}:{t+5}], v[{t+4}:{t+5}], v[{VR[rt]}:{VR[rt]+1}] op_sel_hi:[1,0]")
                K(f"v_pk_fma_f32 v[{t}:{t+1}], v[{t+4}:{t+5}], v[{t+2}:{t+3}], v[{t}:{t+1}]")
                acc_stats(i == 0, rt, t)
                K(f"v_cvt_pk_bf16_f32 v{x}, v{t}, v{t+1}")
    def baddr(dst, base):
        K("v_bfe_u32 v13, v1, 4, 1")
        K("v_bfe_u32 v14, v1, 2, 2")
        K("v_and_b32 v15, 3, v1")
        K(f"v_lshlrev_b32 v{dst}, 1, v13")
        K("v_lshrrev_b32 v13, 1, v15")
        K(f"v_add_u32 v{dst}, v{dst}, v13")
        K(f"s_lshl_b32 s{T0}, s{S_CH}, 2")
        K(f"v_add_u32 v{dst}, s{T0}, v{dst}")
        K("v_bfe_u32 v13, v14, 1, 1")
        K("v_lshlrev_b32 v13, 2, v13")
        K(f"v_xor_b32 v{dst}, v{dst}, v13")
        K(f"v_lshlrev_b32 v{dst}, 4, v{dst}")
        K("v_and_b32 v13, 1, v15")
        K(f"v_lshl_add_u32 v{dst}, v13, 3, v{dst}")
        K("v_lshl_add_u32 v13, v3, 3, v14")
        K(f"v_lshl_add_u32 v{dst}, v13, 7, v{dst}")
    def aaddr0(dst):
        K(f"v_bfe_u32 v{dst}, v2, 1, 3")
        K(f"v_xor_b32 v{dst}, v{dst}, v3")
        K(f"v_lshlrev_b32 v{dst}, 4, v{dst}")
        K(f"v_lshl_add_u32 v{dst}, v2, 7, v{dst}")
        K(f"s_lshl_b32 s{T0}, s{S_RH}, 13")
        K(f"v_add_u32 v{dst}, s{T0}, v{dst}")
    VA0 = 27; VB0 = 28
    def set_addr(abase, bbase):
        K(f"v_add_u32 v8, {abase}, v{VA0}")
        for ks in range(1, 4): K(f"v_xor_b32 v{8+ks}, {ks<<5}, v8")
        K(f"v_add_u32 v12, {bbase}, v{VB0}")
    def MSLs():
        K(f"s_lshr_b32 s{T0+3}, s{S_W}, 1")
        K(f"s_add_u32 s{T0+3}, s{T0+3}, 1")
        K(f"s_mul_i32 s{T0+3}, s{T0+3}, 24576")
        K(f"s_lshl_b32 s{T0+4}, s{S_RH}, 13")
        K(f"s_add_u32 s{T0+3}, s{T0+3}, s{T0+4}")
    def m_load_sum():
        K(f"s_lshl_b32 s{T0}, s{S_CT}, 1")
        K(f"s_add_u32 s{T0}, s{T0}, s{S_CH}")
        K(f"s_lshl_b32 s{T0}, s{T0}, 4")
        K(f"s_lshr_b32 s{T0+1}, s{S_W}, 2")
        K(f"s_lshl_b32 s{T0+1}, s{T0+1}, 1")
        K(f"s_add_u32 s{T0+1}, s{T0+1}, s{S_RH}")
        K(f"s_lshl_b32 s{T0+1}, s{T0+1}, 2")
        K(f"s_add_u32 s{T0}, s{T0}, s{T0+1}")
        K(f"s_mul_i32 s{T0}, s{T0}, {KVP_STRIDE}")
        K(f"s_add_u32 s{T0}, s{T0}, s{S_KVPOFF}")
        K("v_lshlrev_b32 v6, 4, v1")
        K("v_lshlrev_b32 v7, 2, v2")
        K("v_add_u32 v7, 2048, v7")
        T = 128; Z = 48
        for p in range(4):
            for h in range(2):
                K(f"buffer_load_dwordx4 {v(T+8*p+4*h,4)}, v6, {WS}, s{T0} offen offset:{h*1024} sc1")
            K(f"buffer_load_dword v{Z+p}, v7, {WS}, s{T0} offen sc1")
            if p < 3: K(f"s_add_u32 s{T0}, s{T0}, {KVP_STRIDE}")
        MSLs()
        K(f"v_add_u32 v13, s{T0+3}, v6")
        K("v_lshlrev_b32 v14, 2, v1")
        K(f"v_add_u32 v14, s{T0+3}, v14")
        for p in range(4):
            K(f"s_waitcnt vmcnt({3*(3-p)})")
            for i in range(8):
                r = T + 8*p + i
                if p == 0:
                    K(f"v_lshlrev_b32 v{32+2*i}, 16, v{r}")
                    K(f"v_and_b32 v{33+2*i}, 0xffff0000, v{r}")
                else:
                    t = 52 + 2*(i & 1)
                    K(f"v_lshlrev_b32 v{t}, 16, v{r}")
                    K(f"v_and_b32 v{t+1}, 0xffff0000, v{r}")
                    K(f"v_pk_add_f32 v[{32+2*i}:{33+2*i}], v[{32+2*i}:{33+2*i}], v[{t}:{t+1}]")
        for p in range(1, 4): K(f"v_add_f32 v{Z}, v{Z}, v{Z+p}")
        for qd in range(4): K(f"ds_write_b128 v13, {v(32+4*qd,4)} offset:{qd*1024}")
        K(f"ds_write_b32 v14, v{Z} offset:4096")
        K("s_waitcnt lgkmcnt(0)")

    cur[0] = "C"
    K("s_waitcnt vmcnt(0)")
    ST(1)
    BAR("A0")
    HR = 128
    SD, SDO, SLB = T0+10, T0+11, T0+12
    K(f"s_lshl_b32 s{SD}, s{S_CT}, 6")
    K(f"s_lshl_b32 s{SDO}, s{S_RB}, 2")
    K(f"s_add_u32 s{SD}, s{SD}, s{SDO}")
    K(f"s_add_u32 s{SD}, s{SD}, s{S_W}")
    K(f"s_lshl_b32 s{SDO}, s{SD}, 12")
    K(f"s_mul_i32 s{SLB}, s{S_W}, {WP}")
    K("v_lshlrev_b32 v6, 4, v1")
    for j in range(4): K(f"buffer_load_dwordx4 {v(HR+4*j,4)}, v6, {srd(S_H)}, s{SDO} offen offset:{1024*j}")
    for j in range(4): K(f"buffer_load_dword v{HR+16+j}, v6, {srd(S_H)}, s{SDO} offen offset:{1024*j+16}")
    K(f"s_lshl_b32 s{T0+5}, s{SD}, 1")
    K(f"v_mov_b32 v150, s{T0+5}")
    K("buffer_load_ushort v148, v150, s[84:87], 0 offen")
    K("v_lshlrev_b32 v4, 11, v2")
    K("v_lshl_add_u32 v4, v3, 4, v4")
    K(f"s_lshl_b32 s{T0}, s{S_RB}, 18")
    K(f"s_lshl_b32 s{T0+1}, s{S_RH}, 17")
    K(f"s_add_u32 s{T0}, s{T0}, s{T0+1}")
    K(f"s_lshl_b32 s{T0+1}, s{S_CT}, 7")
    K(f"s_add_u32 s{T0}, s{T0}, s{T0+1}")
    K(f"s_lshl_b32 s{T0+1}, s{S_CH}, 6")
    K(f"s_add_u32 s{T0+8}, s{T0}, s{T0+1}")
    K(f"s_add_u32 s{T0+9}, s{T0+8}, 0x10000")
    aaddr0(VA0); baddr(VB0, 0)
    K(f"v_add_u32 v7, s{SLB}, v6")
    K("v_mov_b32 v88, 0\nv_mov_b32 v89, 0\nv_mov_b32 v90, 0\nv_mov_b32 v91, 0")
    K("v_cmp_gt_u32 vcc, 2, v1")
    K("s_and_saveexec_b64 s[90:91], vcc")
    K(f"ds_write_b128 v7, v[88:91] offset:{HE}")
    K(f"ds_write_b128 v7, v[88:91] offset:{HO}")
    K("s_mov_b64 exec, s[90:91]")
    K("v_cmp_gt_u32 vcc, 30, v1")
    K("s_and_saveexec_b64 s[90:91], vcc")
    K(f"ds_write_b128 v7, v[88:91] offset:{UR+4096}")
    K("s_mov_b64 exec, s[90:91]")
    K("v_and_b32 v5, 15, v1")
    K("v_lshrrev_b32 v13, 4, v1")
    K("v_lshrrev_b32 v8, 1, v5")
    K("v_lshl_add_u32 v8, v13, 2, v8")
    K("v_lshlrev_b32 v8, 2, v8")
    K("v_and_b32 v9, 1, v5")
    K(f"v_mov_b32 v10, {HO}")
    K(f"v_mov_b32 v11, {HE + 4}")
    K("v_cmp_eq_u32 vcc, 1, v9")
    K("s_nop 1")
    K("v_cndmask_b32 v10, v10, v11, vcc")
    K("v_add_u32 v8, v8, v10")
    K(f"v_add_u32 v8, s{SLB}, v8")
    AR = [8, 9, 10, 11]
    for m in range(1, 4): K(f"v_add_u32 v{AR[m]}, {1024*m}, v8")
    K("v_lshlrev_b32 v12, 4, v13")
    K("v_lshlrev_b32 v14, 5, v5")
    K("v_sub_u32 v12, v12, v14")
    K(f"v_add_u32 v12, {UR + 4032 + 32 - 512*7}, v12")
    K(f"v_add_u32 v12, s{SLB}, v12")
    CACC = 32
    for i in range(32): K(f"v_mov_b32 v{CACC+i}, 0")
    K("s_waitcnt vmcnt(0)")
    for j in range(4): K(f"ds_write_b128 v7, {v(HR+4*j,4)} offset:{HE+32+1024*j}")
    for j in range(4):
        b = HR + 4*j; o = 92 + 4*(j & 1)
        K(f"v_alignbit_b32 v{o}, v{b+1}, v{b}, 16")
        K(f"v_alignbit_b32 v{o+1}, v{b+2}, v{b+1}, 16")
        K(f"v_alignbit_b32 v{o+2}, v{b+3}, v{b+2}, 16")
        K(f"v_alignbit_b32 v{o+3}, v{HR+16+j}, v{b+3}, 16")
        K(f"ds_write_b128 v7, {v(o,4)} offset:{HO+32+1024*j}")
    K(f"v_lshlrev_b32 v88, 16, v{HR}")
    K("v_cmp_eq_u32 vcc, 0, v1")
    K("s_and_saveexec_b64 s[90:91], vcc")
    K(f"ds_write_b32 v7, v88 offset:{HO+28}")
    K("s_mov_b64 exec, s[90:91]")
    K("v_lshlrev_b32 v30, 16, v148")
    BAR("B0")
    ST(2); STC(52)
    for j in range(4):
        K(f"buffer_load_dwordx4 {v(64+4*j,4)}, v6, {WS}, s{SDO} offen offset:{1024*j} sc1")
    K("s_waitcnt vmcnt(0)")
    BAR("B0b")
    for j in range(4): K(f"ds_write_b128 v7, {v(64+4*j,4)} offset:{UR+1024*j}")
    for rt in range(2):
        for qq in range(2):
            K(f"buffer_load_dwordx4 {v(XT+8*rt+4*qq,4)}, v4, {srd(S_Q)}, s{T0+8+rt} offen offset:{32*qq}")
    K("s_waitcnt lgkmcnt(0)")
    SET = [64, 128]
    def cloads(c0, st):
        ins = []
        for c1 in range(8):
            o = 16*c0 + 128*(c1 & 1)
            ins.append(f"ds_read_b128 {v(st+32+4*c1,4)}, v12 offset:{512*(7-c1)+64*c0}")
            ins.append(f"ds_read2_b32 {v(st+4*c1,2)}, v{AR[c1>>1]} offset0:{o} offset1:{o+1}")
            ins.append(f"ds_read2_b32 {v(st+4*c1+2,2)}, v{AR[c1>>1]} offset0:{o+2} offset1:{o+3}")
        return ins
    for x in cloads(0, SET[0]): K(x)
    K(f"s_mov_b32 s{T0+5}, 0")
    ALIGN()
    K.label("L_conv")
    for half in range(2):
        st = SET[half]
        nxt = cloads(half+1, SET[half ^ 1])
        K("s_waitcnt lgkmcnt(0)")
        n = 0
        for c1 in range(8):
            for g in range(c1, 8):
                K(f"v_mfma_f32_16x16x32_bf16 {v(CACC+4*g,4)}, {v(st+4*c1,4)}, {v(st+32+4*(g-c1),4)}, {v(CACC+4*g,4)}")
                if n < len(nxt): K(nxt[n])
                n += 1
    for r in AR + [12]: K(f"v_add_u32 v{r}, 128, v{r}")
    K(f"s_add_u32 s{T0+5}, s{T0+5}, 1")
    K(f"s_cmp_lt_u32 s{T0+5}, 4")
    K("s_cbranch_scc1 L_conv")
    K("s_waitcnt lgkmcnt(0)")
    ST(3); STC(53)
    K("v_lshlrev_b32 v12, 3, v13")
    K("v_add_u32 v12, v12, v14")
    K(f"v_sub_u32 v8, {UR + 4088 - 512*7}, v12")
    K(f"v_add_u32 v8, s{SLB}, v8")
    for g in range(8): K(f"ds_read_b64 {v(64+2*g,2)}, v8 offset:{512*(7-g)}")
    K(f"s_add_u32 s{T0+5}, s{SDO}, {WS_YT:#x}")
    K(f"v_add_u32 v13, s{SLB}, v12")
    for g in range(8):
        a = CACC + 4*g; kd = 64 + 2*g; b = 96 + 16*(g & 1)
        K(f"s_waitcnt lgkmcnt({min(7-g,7) if g < 1 else 7})" if False else f"s_waitcnt lgkmcnt({7})" if g == 0 else "s_nop 0") if False else None
        if g == 0: K("s_waitcnt lgkmcnt(0)")
        K(f"v_and_b32 v{b}, 0xffff0000, v{kd+1}")
        K(f"v_lshlrev_b32 v{b+1}, 16, v{kd+1}")
        K(f"v_and_b32 v{b+2}, 0xffff0000, v{kd}")
        K(f"v_lshlrev_b32 v{b+3}, 16, v{kd}")
        K(f"v_pk_fma_f32 v[{b}:{b+1}], v[{b}:{b+1}], v[30:31], v[{a}:{a+1}] op_sel_hi:[1,0,1]")
        K(f"v_pk_fma_f32 v[{b+2}:{b+3}], v[{b+2}:{b+3}], v[30:31], v[{a+2}:{a+3}] op_sel_hi:[1,0,1]")
        K(f"v_cvt_pk_bf16_f32 v{b+12}, v{b}, v{b+1}\nv_cvt_pk_bf16_f32 v{b+13}, v{b+2}, v{b+3}")
        K(f"ds_write_b64 v13, {v(b+12,2)} offset:{512*g}")
    K("v_lshlrev_b32 v6, 4, v1")
    K(f"v_add_u32 v7, s{SLB}, v6")
    K("s_waitcnt lgkmcnt(0)")
    for j in range(4): K(f"ds_read_b128 {v(64+4*j,4)}, v7 offset:{1024*j}")
    for j in range(4):
        K(f"s_waitcnt lgkmcnt({3-j})")
        K(f"buffer_store_dwordx4 {v(64+4*j,4)}, v6, {WS}, s{T0+5} offen offset:{1024*j} sc1")
    ST(4)
    K("s_waitcnt vmcnt(0)")
    BAR("A1"); BAR("B1")
    ST(5)
    stats_load(f"{WS_STQ:#x}", 64)
    K(f"s_mul_i32 s{T0}, s{S_CT}, {16*768}")
    K(f"s_add_u32 s{T0}, s{T0}, {WS_CSP:#x}")
    K(f"s_lshl_b32 s{T0+1}, s{S_CH}, 7")
    K(f"s_add_u32 s{T0}, s{T0}, s{T0+1}")
    K("v_lshlrev_b32 v5, 2, v2")
    K("v_mul_u32_u24 v6, 6144, v3")
    K("v_add_u32 v5, v5, v6")
    CS = 96
    for j in range(8):
        for sl in range(3):
            K(f"buffer_load_dword v{CS+3*j+sl}, v5, {WS}, s{T0} offen offset:{sl*256} sc1")
        if j < 7: K(f"s_add_u32 s{T0}, s{T0}, 768")
    K("v_bfe_u32 v5, v1, 2, 2")
    K("v_lshl_add_u32 v5, v3, 3, v5")
    K("v_lshlrev_b32 v5, 8, v5")
    K("v_bfe_u32 v6, v1, 4, 1")
    K("v_lshl_add_u32 v5, v6, 5, v5")
    K("v_and_b32 v6, 3, v1")
    K("v_lshl_add_u32 v5, v6, 3, v5")
    K(f"s_lshl_b32 s{T0}, s{S_CH}, 13")
    K(f"s_lshl_b32 s{T0+1}, s{S_RH}, 7")
    K(f"s_add_u32 s{T0}, s{T0}, s{T0+1}")
    K(f"v_add_u32 v5, s{T0}, v5")
    K("s_waitcnt vmcnt(24)")
    stats_reduce(64)
    BAR("C1")
    for rt in range(2):
        for qq in range(2):
            for t in range(2):
                K(f"ds_read_b64_tr_b16 {v(YT+8*rt+4*qq+2*t,2)}, v5 offset:{(16*qq+4*t)*256 + rt*64}")
    K("s_waitcnt vmcnt(0)")
    for sl in range(3):
        for j in range(1, 8): K(f"v_add_f32 v{CS+sl}, v{CS+sl}, v{CS+3*j+sl}")
    for sl in range(3): K(f"v_mov_b32 v{CS+4+sl}, v{CS+sl}")
    K("s_nop 1")
    for sl in range(3): K(f"v_permlane32_swap_b32 v{CS+4+sl}, v{CS+sl}")
    K("s_nop 1")
    for sl in range(3): K(f"v_add_f32 v{VCS[sl]}, v{CS+sl}, v{CS+4+sl}")
    K("s_waitcnt lgkmcnt(0)")
    K.label("L_etail")
    e_phase()
    tile_write(XA_TB, XT)
    stats_to_lds(S2, Q2, XA_SX)
    set_addr(XA_TB, XA_TB + 16384)
    AA = [8, 9, 10, 11]; BA = 12
    ACC = 128; FR = [32, 52]
    K(f"s_mov_b32 s{T0+2}, {G1STG}")
    K(f"s_mov_b32 s{T0+3}, 0")
    K(f"s_mov_b32 s{T0+4}, 2")
    K("s_waitcnt lgkmcnt(0)")
    ST(6)
    BAR("S2")
    ST(8); STC(50)
    def reads(st_regs, ks):
        r = []
        for rt in range(2): r.append(f"ds_read_b128 {v(st_regs+4*rt,4)}, v{AA[ks]} offset:{rt*4096}")
        for sl in range(3):
            for t in range(2):
                r.append(f"ds_read_b64_tr_b16 {v(st_regs+8+4*sl+2*t,2)}, v{BA} offset:{sl*8192+ks*2048+t*512}")
        return r
    def mfmas(st_regs, zero=False):
        m = []
        for rt in range(2):
            A = v(st_regs+4*rt, 4)
            for sl in range(3):
                B = v(st_regs+8+4*sl, 4); acc = v(ACC + 16*(2*sl+rt), 16)
                c = "0" if zero else acc
                if sl == 0: m.append(f"v_mfma_f32_32x32x16_bf16 {acc}, {B}, {A}, {c}")
                else:       m.append(f"v_mfma_f32_32x32x16_bf16 {acc}, {A}, {B}, {c}")
        return m
    def interleave(ms, rs):
        return [ms[0]] + rs[:2] + [ms[1]] + rs[2:4] + [ms[2]] + rs[4:6] + [ms[3]] + rs[6:] + ms[4:]
    for x in reads(FR[0], 0): K(x)
    K("s_waitcnt lgkmcnt(0)")
    for x in interleave(mfmas(FR[0], zero=True), reads(FR[1], 1)): K(x)
    ALIGN()
    K.label("L_g1loop")
    for ks in (1, 2, 3, 0):
        c_ = FR[ks & 1]; n_ = FR[(ks+1) & 1]
        if ks == 3:
            K(f"s_add_u32 s{T0+4}, s{T0+4}, 1")
            K(f"s_cmp_eq_u32 s{T0+4}, {G1N}")
            K(f"s_cselect_b32 s{T0+5}, {(-(G1N-1)*G1STG) & 0xffffffff:#x}, s{T0+2}")
            K(f"s_cselect_b32 s{T0+4}, 0, s{T0+4}")
            K(f"s_add_u32 s{T0+3}, s{T0+3}, 1")
            K(f"s_cmp_eq_u32 s{T0+3}, 16")
        K("s_waitcnt lgkmcnt(0)")
        if ks == 3:
            K("s_cbranch_scc1 L_g1last")
            for r in AA + [BA]: K(f"v_add_u32 v{r}, s{T0+5}, v{r}")
            K("s_barrier")
            K(f"s_cmp_eq_u32 s{T0+3}, 1")
            K("s_cbranch_scc1 L_g1st")
            K.label("L_g1stb")
            for x in interleave(mfmas(c_), reads(n_, 0)): K(x)
        elif ks == 0:
            for x in interleave(mfmas(c_), reads(n_, 1)): K(x)
            K("s_branch L_g1loop")
        else:
            for x in interleave(mfmas(c_), reads(n_, ks+1)): K(x)
    K.label("L_g1st")
    stats_load(f"s{S_STXA}", 72)
    K("s_branch L_g1stb")
    K.label("L_g1last")
    for x in mfmas(FR[1]): K(x)
    bars["C"].append("G1.loop15")
    ST(9); STC(51)
    K("s_waitcnt vmcnt(0)")
    stats_reduce(72)
    def split(x, hi, lo):
        K(f"v_and_b32 v{hi}, 0xffff0000, v{x}")
        K(f"v_sub_f32 v{lo}, v{x}, v{hi}")
    K("v_cmp_eq_u32 vcc, 1, v3")
    K(f"s_lshl_b32 s{T0}, s{S_W}, 8")
    K(f"s_add_u32 s{T0}, s{T0}, {RSTAT}")
    K(f"v_cndmask_b32 v32, v{VR[0]}, v{VR[1]}, vcc")
    K("v_lshlrev_b32 v33, 2, v1")
    K(f"v_add_u32 v33, s{T0}, v33")
    K("ds_write_b32 v33, v32")
    K("v_lshlrev_b32 v33, 4, v3")
    K(f"v_add_u32 v33, s{T0}, v33")
    RM = 64
    for rt in range(2):
        for q in range(4): K(f"ds_read_b128 {v(RM+16*rt+4*q,4)}, v33 offset:{rt*128+q*32}")
    K("v_cmp_eq_u32 vcc, 0, v3")
    for rt in range(2):
        split(VM[rt], 32, 33)
        o = 40 + 4*rt
        K("v_lshrrev_b32 v34, 16, v32")
        K(f"v_or_b32 v{o}, v34, v32")
        K(f"v_cvt_pk_bf16_f32 v{o+1}, v33, v33")
        K(f"v_and_b32 v{o+1}, 0xffff, v{o+1}")
        K(f"v_cndmask_b32 v{o}, 0, v{o}, vcc")
        K(f"v_cndmask_b32 v{o+1}, 0, v{o+1}, vcc")
        K(f"v_mov_b32 v{o+2}, 0\nv_mov_b32 v{o+3}, 0")
    for sl in (1, 2, 0):
        K(f"v_sub_f32 v35, 0, v{VCS[sl]}")
        split(35, 32, 33)
        o = 48 + 4*sl
        K(f"v_cvt_pk_bf16_f32 v{o}, v32, v33")
        K(f"v_lshrrev_b32 v{o+1}, 16, v32")
        K(f"v_cndmask_b32 v{o}, 0, v{o}, vcc")
        K(f"v_cndmask_b32 v{o+1}, 0, v{o+1}, vcc")
        K(f"v_mov_b32 v{o+2}, 0\nv_mov_b32 v{o+3}, 0")
    K(f"s_mov_b32 s{T0+6}, 0x3fb8aa3b")
    K(f"s_mov_b32 s{T0+7}, 0x3fb8aa3b")
    for sl in (1, 2, 0):
        for rt in range(2):
            acc = v(ACC + 16*(2*sl+rt), 16); M = v(40+4*rt, 4); C = v(48+4*sl, 4)
            if sl == 0: K(f"v_mfma_f32_32x32x16_bf16 {acc}, {C}, {M}, {acc}")
            else:       K(f"v_mfma_f32_32x32x16_bf16 {acc}, {M}, {C}, {acc}")
    K(f"s_mov_b32 s{T0+8}, 0x358637bd")
    K(f"s_mov_b32 s{T0+9}, 0x358637bd")
    SLOG = f"s[{T0+6}:{T0+7}]"; SEPS = f"s[{T0+8}:{T0+9}]"
    K("s_waitcnt lgkmcnt(0)")
    K("s_nop 4")
    KA_, VA_, QA_ = ACC+32, ACC+64, ACC
    def phi_pairs(base, n, T):
        for i in range(0, n, 8):
            for j in range(0, 8, 2): K(f"v_pk_mul_f32 v[{T+j}:{T+j+1}], v[{base+i+j}:{base+i+j+1}], {SLOG}")
            for j in range(8): K(f"v_exp_f32 v{T+j}, v{T+j} clamp")
            for j in range(8): K(f"v_max_f32 v{base+i+j}, 0, v{base+i+j}")
            for j in range(0, 8, 2): K(f"v_pk_add_f32 v[{T+j}:{T+j+1}], v[{T+j}:{T+j+1}], {SEPS}")
            for j in range(0, 8, 2): K(f"v_pk_add_f32 v[{base+i+j}:{base+i+j+1}], v[{base+i+j}:{base+i+j+1}], v[{T+j}:{T+j+1}]")
    for i in range(0, 32, 2): K(f"v_pk_mul_f32 v[{KA_+i}:{KA_+i+1}], v[{KA_+i}:{KA_+i+1}], v[{RM+i}:{RM+i+1}]")
    phi_pairs(KA_, 32, 32)
    for i in range(0, 32, 2): K(f"v_pk_mul_f32 v[{VA_+i}:{VA_+i+1}], v[{VA_+i}:{VA_+i+1}], v[{RM+i}:{RM+i+1}]")
    PK = 96; PV = 112
    for i in range(16):
        K(f"v_cvt_pk_bf16_f32 v{PK+i}, v{KA_+2*i}, v{KA_+2*i+1}")
        K(f"v_cvt_pk_bf16_f32 v{PV+i}, v{VA_+2*i}, v{VA_+2*i+1}")
    KVD = 64
    first = True
    for rt in range(2):
        for ks in range(2):
            c = "0" if first else v(KVD, 16)
            K(f"v_mfma_f32_32x32x16_bf16 {v(KVD,16)}, {v(PK+8*rt+4*ks,4)}, {v(PV+8*rt+4*ks,4)}, {c}")
            first = False
    K(f"v_pk_add_f32 v[28+14:29+14], v[{KA_}:{KA_+1}], v[{KA_+2}:{KA_+3}]".replace("28+14", "42").replace("29+14", "43"))
    for i in range(4, 32, 2): K(f"v_pk_add_f32 v[42:43], v[42:43], v[{KA_+i}:{KA_+i+1}]")
    K("v_add_f32 v42, v42, v43")
    K("v_mov_b32 v43, v42")
    K(f"s_mul_i32 s{T0}, s{S_CH}, 4352")
    K(f"s_add_u32 s{T0}, s{T0}, {X3B}")
    K("v_permlane32_swap_b32 v43, v42")
    K("v_lshlrev_b32 v6, 4, v1")
    K(f"v_add_u32 v8, s{T0}, v6")
    K("v_add_f32 v42, v42, v43")
    K("v_lshlrev_b32 v9, 2, v1")
    K(f"v_add_u32 v9, s{T0}, v9")
    K(f"s_cmp_eq_u32 s{S_RH}, 0")
    K("s_cbranch_scc1 L_kvw0")
    K("s_nop 1")
    for qd in range(4): K(f"ds_write_b128 v8, {v(KVD+4*qd,4)} offset:{qd*1024}")
    K("ds_write_b32 v9, v42 offset:4096")
    K("s_waitcnt lgkmcnt(0)")
    BAR("X3")
    K("s_branch L_kvw1")
    K.label("L_kvw0")
    K(f"s_lshl_b32 s{T0}, s{S_CT}, 1")
    K(f"s_add_u32 s{T0}, s{T0}, s{S_CH}")
    K(f"s_lshl_b32 s{T0}, s{T0}, 4")
    K(f"s_add_u32 s{T0}, s{T0}, s{S_RB}")
    K(f"s_mul_i32 s{T0}, s{T0}, {KVP_STRIDE}")
    K(f"s_add_u32 s{T0}, s{T0}, s{S_KVPOFF}")
    K("v_lshlrev_b32 v7, 2, v1")
    K("v_add_u32 v7, 2048, v7")
    K("s_barrier")
    for qd in range(4): K(f"ds_read_b128 {v(44+4*qd,4)}, v8 offset:{qd*1024}")
    K("ds_read_b32 v60, v9 offset:4096")
    K("s_waitcnt lgkmcnt(0)")
    for i in range(0, 16, 2): K(f"v_pk_add_f32 v[{KVD+i}:{KVD+i+1}], v[{KVD+i}:{KVD+i+1}], v[{44+i}:{45+i}]")
    K("v_add_f32 v42, v42, v60")
    for i in range(8): K(f"v_cvt_pk_bf16_f32 v{32+i}, v{KVD+2*i}, v{KVD+2*i+1}")
    for h in range(2): K(f"buffer_store_dwordx4 {v(32+4*h,4)}, v6, {WS}, s{T0} offen offset:{h*1024} sc1")
    K("v_cmp_gt_u32 vcc, 32, v1")
    K("s_and_saveexec_b64 s[90:91], vcc")
    K(f"buffer_store_dword v42, v7, {WS}, s{T0} offen sc1")
    K("s_mov_b64 exec, s[90:91]")
    K("s_waitcnt vmcnt(0)")
    K.label("L_kvw1")
    ST(10)
    BAR("A3")
    for rt in range(2):
        for i in range(0, 16, 2):
            K(f"v_pk_mul_f32 v[{QA_+16*rt+i}:{QA_+16*rt+i+1}], v[{QA_+16*rt+i}:{QA_+16*rt+i+1}], v[{VR[rt]}:{VR[rt]+1}] op_sel_hi:[1,0]")
    phi_pairs(QA_, 32, 32)
    PQ = 96
    for i in range(16): K(f"v_cvt_pk_bf16_f32 v{PQ+i}, v{QA_+2*i}, v{QA_+2*i+1}")
    set_addr(0, 16384)
    ST(11)
    BAR("B3")
    ST(12)
    m_load_sum()
    BAR("C3")
    K(f"s_mul_i32 s{T0}, s{S_CH}, 24576")
    K(f"s_add_u32 s{T0}, s{T0}, 24576")
    K(f"v_add_u32 v13, s{T0}, v6")
    K("v_lshlrev_b32 v14, 4, v3")
    K(f"v_add_u32 v14, s{T0}, v14")
    slots = [0, 8192, 49152, 49152+8192]
    for si, so in enumerate(slots):
        for qd in range(4): K(f"ds_read_b128 {v(128+16*si+4*qd,4)}, v13 offset:{so+qd*1024}")
        if si & 1: K("s_waitcnt lgkmcnt(0)")
    for si, so in enumerate(slots):
        for qd in range(4): K(f"ds_read_b128 {v(32+16*si+4*qd,4)}, v14 offset:{so+4096+32*qd}")
        if si == 1: K("s_waitcnt lgkmcnt(0)")
    for i in range(0, 16, 2):
        K(f"v_pk_add_f32 v[{128+i}:{129+i}], v[{128+i}:{129+i}], v[{144+i}:{145+i}]")
        K(f"v_pk_add_f32 v[{160+i}:{161+i}], v[{160+i}:{161+i}], v[{176+i}:{177+i}]")
    for i in range(0, 16, 2):
        K(f"v_pk_add_f32 v[{128+i}:{129+i}], v[{128+i}:{129+i}], v[{160+i}:{161+i}]")
    for i in range(8): K(f"v_cvt_pk_bf16_f32 v{176+i}, v{128+2*i}, v{128+2*i+1}")
    K("s_waitcnt lgkmcnt(0)")
    for rt in range(2):
        acc = v(144+16*rt, 16)
        K(f"v_mfma_f32_32x32x16_bf16 {acc}, v[176:179], {v(PQ+8*rt,4)}, 0")
        K(f"v_mfma_f32_32x32x16_bf16 {acc}, v[180:183], {v(PQ+8*rt+4,4)}, {acc}")
    for i in range(0, 16, 2):
        K(f"v_pk_add_f32 v[{32+i}:{33+i}], v[{32+i}:{33+i}], v[{48+i}:{49+i}]")
        K(f"v_pk_add_f32 v[{64+i}:{65+i}], v[{64+i}:{65+i}], v[{80+i}:{81+i}]")
    for i in range(0, 16, 2):
        K(f"v_pk_add_f32 v[{32+i}:{33+i}], v[{32+i}:{33+i}], v[{64+i}:{65+i}]")
    for i in range(8):
        for rt in range(2):
            D = 48 + 2*rt
            t = 56 + 2*rt + 4*(i & 1)
            K(f"v_lshlrev_b32 v{t}, 16, v{PQ+8*rt+i}")
            K(f"v_and_b32 v{t+1}, 0xffff0000, v{PQ+8*rt+i}")
            if i == 0: K(f"v_pk_mul_f32 v[{D}:{D+1}], v[{t}:{t+1}], v[{32+2*i}:{33+2*i}]")
            else:      K(f"v_pk_fma_f32 v[{D}:{D+1}], v[{t}:{t+1}], v[{32+2*i}:{33+2*i}], v[{D}:{D+1}]")
    for rt in range(2): K(f"v_add_f32 v{48+2*rt}, v{48+2*rt}, v{49+2*rt}")
    for rt in range(2): K(f"v_mov_b32 v{49+2*rt}, v{48+2*rt}")
    K("s_nop 1")
    for rt in range(2): K(f"v_permlane32_swap_b32 v{49+2*rt}, v{48+2*rt}")
    K("s_nop 1")
    for rt in range(2):
        K(f"v_add_f32 v{48+2*rt}, v{48+2*rt}, v{49+2*rt}")
        K(f"v_add_f32 v{48+2*rt}, s{T0+8}, v{48+2*rt}")
        K(f"v_rcp_f32 v{48+2*rt}, v{48+2*rt}")
    K("s_nop 0")
    for rt in range(2):
        acc = 144 + 16*rt
        for i in range(0, 16, 2):
            K(f"v_pk_mul_f32 v[{acc+i}:{acc+i+1}], v[{acc+i}:{acc+i+1}], v[{48+2*rt}:{49+2*rt}] op_sel_hi:[1,0]")
        for qq in range(2):
            o = 64 + 8*rt + 4*qq
            for j in range(4): K(f"v_cvt_pk_bf16_f32 v{o+j}, v{acc+8*qq+2*j}, v{acc+8*qq+2*j+1}")
    K("s_nop 1")
    for rt in range(2):
        for qq in range(2):
            o = 64 + 8*rt + 4*qq
            K(f"v_permlane32_swap_b32 v{o}, v{o+2}")
            K(f"v_permlane32_swap_b32 v{o+1}, v{o+3}")
    tile_write(O_TB, 64)
    GACC = 128; GF = [32, 80]
    K(f"s_mov_b32 s{T0+2}, {G2STG}")
    K(f"s_mov_b32 s{T0+4}, 0")
    K(f"s_mov_b32 s{T0+3}, 0")
    K("s_waitcnt lgkmcnt(0)")
    ST(13)
    BAR("S4")
    ST(14); STC(54)
    def reads2(st):
        r = []
        for ks in range(4):
            for rt in range(2): r.append(f"ds_read_b128 {v(st+12*ks+4*rt,4)}, v{AA[ks]} offset:{rt*4096}")
            for t in range(2):  r.append(f"ds_read_b64_tr_b16 {v(st+12*ks+8+2*t,2)}, v{BA} offset:{ks*2048+t*512}")
        return r
    def mfmas2(st, zero=False):
        m = []
        for ks in range(4):
            for rt in range(2):
                acc = v(GACC+16*rt, 16)
                c = "0" if (zero and ks == 0) else acc
                m.append(f"v_mfma_f32_32x32x16_bf16 {acc}, {v(st+12*ks+8,4)}, {v(st+12*ks+4*rt,4)}, {c}")
        return m
    def adv2():
        K(f"s_add_u32 s{T0+4}, s{T0+4}, 1")
        K(f"s_cmp_eq_u32 s{T0+4}, {G2N}")
        K(f"s_cselect_b32 s{T0+5}, {(-(G2N-1)*G2STG) & 0xffffffff:#x}, s{T0+2}")
        K(f"s_cselect_b32 s{T0+4}, 0, s{T0+4}")
        for r in AA + [BA]: K(f"v_add_u32 v{r}, s{T0+5}, v{r}")
    for x in reads2(GF[0]): K(x)
    adv2()
    K("s_waitcnt lgkmcnt(0)")
    for m in mfmas2(GF[0], zero=True): K(m)
    K("s_barrier")
    for x in reads2(GF[1]): K(x)
    adv2()
    K(f"s_mov_b32 s{T0+3}, 1")
    ALIGN()
    K.label("L_g2loop")
    for half in (1, 0):
        c_ = GF[half]; n_ = GF[half ^ 1]
        K("s_waitcnt lgkmcnt(0)")
        if half == 1:
            K(f"s_cmp_eq_u32 s{T0+3}, 15")
            K("s_cbranch_scc1 L_g2last")
        K("s_barrier")
        ms = mfmas2(c_); rs = reads2(n_)
        for i, m in enumerate(ms):
            K(m)
            for x in rs[2*i:2*i+2]: K(x)
        adv2()
        if half == 0:
            K(f"s_add_u32 s{T0+3}, s{T0+3}, 2")
            K("s_branch L_g2loop")
    K.label("L_g2last")
    for m in mfmas2(GF[1]): K(m)
    bars["C"].append("G2.loop15")
    ST(15); STC(55)
    BAR("D5")
    K("s_nop 7")
    K("s_nop 3")
    for rt in range(2):
        acc = GACC + 16*rt
        for qq in range(2):
            a = acc + 8*qq
            for j in range(4): K(f"v_permlane32_swap_b32 v{a+j}, v{a+4+j}")
    n = 0
    for qq in range(2):
        for j in range(4):
            for rt in range(2):
                acc = GACC + 16*rt
                a = acc + 8*qq; r = XT + 8*rt + 4*qq
                t = 56 + 2*(n % 4); n += 1
                K(f"v_lshlrev_b32 v{t}, 16, v{r+j}")
                K(f"v_and_b32 v{t+1}, 0xffff0000, v{r+j}")
                K(f"v_pk_add_f32 v[{a+2*j}:{a+2*j+1}], v[{a+2*j}:{a+2*j+1}], v[{t}:{t+1}]")
                acc_stats(qq == 0 and j == 0, rt, a+2*j)
                K(f"v_cvt_pk_bf16_f32 v{r+j}, v{a+2*j}, v{a+2*j+1}")
    K(f"s_cmp_eq_u32 s{S_LAYER}, 1")
    K("s_cbranch_scc1 L_final")
    stats_to_lds(S2, Q2, X2_SX)
    K("s_waitcnt lgkmcnt(0)")
    ST(16)
    BAR("S5"); BAR("B5")
    ST(17)
    stats_load(f"{WS_STX2:#x}", 64)
    K(f"s_mov_b32 s{S_LAYER}, 1")
    K(f"s_mov_b32 s{S_STXA}, {WS_STXA[1]:#x}")
    K(f"s_mov_b32 s{S_KVPOFF}, {WS_KVP[1]:#x}")
    K("s_waitcnt vmcnt(0)")
    stats_reduce(64)
    K("s_branch L_etail")
    K.label("L_final")
    tile_write(OUT_TB, XT)
    K("s_waitcnt lgkmcnt(0)")
    K("s_barrier")
    ST(18)
    if stamp:
        ST(19); STC(61)
        K(f"s_lshl_b32 s{T0}, s2, 3")
        K(f"s_add_u32 s{T0}, s{T0}, s{S_W}")
        K(f"s_lshl_b32 s{T0}, s{T0}, 8")
        K(f"s_add_u32 s{T0}, s{T0}, {200*MB:#x}")
        K("v_lshlrev_b32 v5, 2, v1")
        K(f"buffer_store_dword v{STV}, v5, {WS}, s{T0} offen")
    K("s_endpgm")

    cur[0] = "H"
    K.label("L_helper")
    SLW = T0+10
    K(f"s_sub_u32 s{SLW}, s{S_W}, 4")
    def poll(conds):
        l = K.newlabel("pw"); le = K.newlabel("pwe")
        for i, (off, sr, tg) in enumerate(conds): K(f"v_mov_b32 v{5+i}, {off}")
        K(f"s_mov_b32 s{T0+1}, 0")
        K.label(l)
        for i, (off, sr, tg) in enumerate(conds): K(f"buffer_load_dword v{8+i}, v{5+i}, {sr}, 0 offen sc1")
        K(f"s_add_u32 s{T0+1}, s{T0+1}, 1")
        K(f"s_cmp_gt_u32 s{T0+1}, 0x40000")
        K(f"s_cbranch_scc1 {le}")
        K("s_waitcnt vmcnt(0)")
        for i, (off, sr, tg) in enumerate(conds):
            K(f"v_xor_b32 v{8+i}, {tg}, v{8+i}")
            if i: K(f"v_or_b32 v8, v8, v{8+i}")
        K("v_cmp_ne_u32 vcc, 0, v8")
        K(f"s_cbranch_vccnz {l}")
        K.label(le)
    def cnt_addr(kind, ph, dst):
        base = S_ROWCNT if kind == "row" else S_COLCNT
        if isinstance(ph, int): K(f"s_add_u32 s{dst}, s{base}, {ph*CNT_PH}")
        else:                   K(f"s_add_u32 s{dst}, s{base}, {ph}")
    def master(arr, waits, go=False):
        lab = K.newlabel("nm")
        K(f"s_cmp_eq_u32 s{S_W}, 4")
        K(f"s_cbranch_scc0 {lab}")
        K("v_cmp_eq_u32 vcc, 0, v1")
        K("s_and_saveexec_b64 s[90:91], vcc")
        if go:
            K(f"s_lshl_b32 s{T0+2}, s{S_RB}, 2")
            K(f"s_lshl_b32 s{T0+3}, s{S_CT}, 2")
            K(f"s_add_u32 s{T0+3}, s{T0+3}, 64")
            poll([(f"s{T0+2}", srd(S_DBG), 1), (f"s{T0+3}", srd(S_DBG), 1)])
        K("v_mov_b32 v10, 1")
        for i, (kind, ph) in enumerate(arr):
            cnt_addr(kind, ph, T0+2)
            K(f"v_mov_b32 v{11+i}, s{T0+2}")
            K(f"buffer_atomic_add v10, v{11+i}, {WS}, 0 offen sc1")
        cs = []
        for i, (kind, ph) in enumerate(waits):
            cnt_addr(kind, ph, T0+2+i)
            cs.append((f"s{T0+2+i}", WS, 16))
        if cs: poll(cs)
        K("s_mov_b64 exec, s[90:91]")
        K.label(lab)
    def lds_sync(SY, kind, ph):
        K(f"v_mov_b32 v5, {SY}")
        K("v_mov_b32 v6, 1")
        K("v_cmp_eq_u32 vcc, 0, v1")
        K("s_and_saveexec_b64 s[90:91], vcc")
        K("ds_add_u32 v5, v6")
        lm = K.newlabel("lm"); le = K.newlabel("ls")
        K(f"s_cmp_eq_u32 s{S_W}, 4")
        K(f"s_cbranch_scc0 {lm}")
        l1 = K.newlabel("l1"); l1e = K.newlabel("l1e")
        K(f"s_mov_b32 s{T0+1}, 0")
        K.label(l1)
        K("ds_read_b32 v7, v5")
        K(f"s_add_u32 s{T0+1}, s{T0+1}, 1")
        K(f"s_cmp_gt_u32 s{T0+1}, 0x100000")
        K(f"s_cbranch_scc1 {l1e}")
        K("s_waitcnt lgkmcnt(0)")
        K("v_cmp_ne_u32 vcc, 4, v7")
        K(f"s_cbranch_vccnz {l1}")
        K.label(l1e)
        cnt_addr(kind, ph, T0+2)
        K(f"v_mov_b32 v11, s{T0+2}")
        K(f"buffer_atomic_add v6, v11, {WS}, 0 offen sc1")
        poll([(f"s{T0+2}", WS, 16)])
        K(f"v_mov_b32 v5, {SY}")
        K("v_mov_b32 v6, 1")
        K("ds_write_b32 v5, v6 offset:4")
        K(f"s_branch {le}")
        K.label(lm)
        l2 = K.newlabel("l2")
        K(f"s_mov_b32 s{T0+1}, 0")
        K.label(l2)
        K("ds_read_b32 v7, v5 offset:4")
        K(f"s_add_u32 s{T0+1}, s{T0+1}, 1")
        K(f"s_cmp_gt_u32 s{T0+1}, 0x400000")
        K(f"s_cbranch_scc1 {le}")
        K("s_waitcnt lgkmcnt(0)")
        K("v_cmp_ne_u32 vcc, 1, v7")
        K(f"s_cbranch_vccnz {l2}")
        K.label(le)
        K("s_waitcnt lgkmcnt(0)")
        K("s_mov_b64 exec, s[90:91]")
    def zero_sync(SY):
        l = K.newlabel("zs")
        K(f"s_cmp_eq_u32 s{S_W}, 5")
        K(f"s_cbranch_scc0 {l}")
        K(f"v_mov_b32 v5, {SY}")
        K("v_mov_b32 v8, 0\nv_mov_b32 v9, 0\nv_mov_b32 v10, 0\nv_mov_b32 v11, 0")
        K("ds_write_b128 v5, v[8:11]")
        K("s_waitcnt lgkmcnt(0)")
        K.label(l)
    K("s_waitcnt vmcnt(0)")
    STH(2)
    BAR("A0")
    STH(3)
    master([("col", C_KVT)], [("col", C_KVT)], go=True)
    STH(7)
    VA = 16; VO = 20; VB = 216; VLIN = 24
    K("v_lshrrev_b32 v5, 3, v1")
    K("v_and_b32 v6, 7, v1")
    K("v_lshrrev_b32 v7, 4, v1")
    K(f"s_lshl_b32 s{T0}, s{S_RB}, 18")
    K(f"s_lshl_b32 s{T0+1}, s{SLW}, 16")
    K(f"s_add_u32 s{T0}, s{T0}, s{T0+1}")
    for i in range(4):
        K(f"v_xor_b32 v8, {4*(i&1)}, v7")
        K("v_xor_b32 v8, v8, v6")
        K("v_lshlrev_b32 v8, 4, v8")
        K(f"v_add_u32 v9, {8*i}, v5")
        K("v_lshl_add_u32 v8, v9, 11, v8")
        K(f"v_add_u32 v{VA+i}, s{T0}, v8")
    K(f"s_lshl_b32 s{T0}, s{SLW}, 12")
    K(f"v_lshlrev_b32 v{VLIN}, 4, v1")
    K(f"v_add_u32 v{VLIN}, s{T0}, v{VLIN}")
    K("v_bfe_u32 v8, v1, 4, 1")
    K("v_lshlrev_b32 v8, 2, v8")
    K("v_xor_b32 v8, v8, v6")
    K("v_lshlrev_b32 v8, 4, v8")
    K(f"s_movk_i32 s{T0}, 6144")
    K(f"v_mul_lo_u32 v9, v5, s{T0}")
    K("v_add_u32 v9, v9, v8")
    K(f"s_lshl_b32 s{T0+1}, s{S_CT}, 7")
    for i in range(6):
        K(f"s_mul_i32 s{T0+2}, s{SLW}, 6")
        K(f"s_add_u32 s{T0+2}, s{T0+2}, {i}")
        K(f"s_lshr_b32 s{T0+3}, s{T0+2}, 3")
        K(f"s_and_b32 s{T0+4}, s{T0+2}, 7")
        K(f"s_lshl_b32 s{T0+3}, s{T0+3}, 11")
        K(f"s_mul_i32 s{T0+4}, s{T0+4}, {8*6144}")
        K(f"s_add_u32 s{T0+3}, s{T0+3}, s{T0+4}")
        K(f"s_add_u32 s{T0+3}, s{T0+3}, s{T0+1}")
        K(f"v_add_u32 v{VB+i}, s{T0+3}, v9")
    K("v_lshl_add_u32 v9, v5, 11, v8")
    for i in range(2):
        K(f"s_lshl_b32 s{T0+2}, s{SLW}, 1")
        K(f"s_add_u32 s{T0+2}, s{T0+2}, {i}")
        K(f"s_lshl_b32 s{T0+2}, s{T0+2}, 14")
        K(f"s_add_u32 s{T0+2}, s{T0+2}, s{T0+1}")
        K(f"v_add_u32 v{VO+i}, s{T0+2}, v9")
    SLA, SLB1, SLB2 = T0+11, T0+12, T0+13
    K(f"s_lshl_b32 s{SLA}, s{SLW}, 12")
    K(f"s_mul_i32 s{SLB1}, s{SLW}, 6144")
    K(f"s_add_u32 s{SLB1}, s{SLB1}, 16384")
    K(f"s_lshl_b32 s{SLB2}, s{SLW}, 11")
    K(f"s_add_u32 s{SLB2}, s{SLB2}, 16384")
    SIA, SIB, SKA, SKB, SABASE = T0+14, T0+15, T0+16, T0+17, T0+18
    SCT7 = T0+19
    K(f"s_lshl_b32 s{SCT7}, s{S_CT}, 7")
    def issueA(buf):
        K(f"s_lshl_b32 s{SKA}, s{SIA}, 7")
        K(f"s_add_u32 s{SKA}, s{SKA}, s{SABASE}")
        K(f"s_add_u32 m0, s{SLA}, {buf}")
        for i in range(4):
            K("s_nop 0")
            K(f"buffer_load_dwordx4 v{VA+i}, {WS}, s{SKA} offen sc1 lds")
            if i < 3: K("s_add_u32 m0, m0, 1024")
        K(f"s_add_u32 s{SIA}, s{SIA}, 1")
        K(f"s_and_b32 s{SIA}, s{SIA}, 15")
    def issueW(buf):
        K(f"s_mul_i32 s{SKB}, s{SIB}, {64*6144}")
        K(f"s_add_u32 m0, s{SLB1}, {buf}")
        for i in range(6):
            K("s_nop 0")
            K(f"buffer_load_dwordx4 v{VB+i}, {srd(S_WQKV)}, s{SKB} offen lds")
            if i < 5: K("s_add_u32 m0, m0, 1024")
        K(f"s_add_u32 s{SIB}, s{SIB}, 1")
        K(f"s_and_b32 s{SIB}, s{SIB}, 15")
    def issueO(buf):
        K(f"s_lshl_b32 s{SKB}, s{SIB}, 17")
        K(f"s_add_u32 m0, s{SLB2}, {buf}")
        for i in range(2):
            K("s_nop 0")
            K(f"buffer_load_dwordx4 v{VO+i}, {srd(S_WO)}, s{SKB} offen lds")
            if i < 1: K("s_add_u32 m0, m0, 1024")
        K(f"s_add_u32 s{SIB}, s{SIB}, 1")
        K(f"s_and_b32 s{SIB}, s{SIB}, 15")
    def tile_store4(TB, sr, soff, sc="sc1"):
        K(f"v_add_u32 v5, {TB}, v{VLIN}")
        for i in range(4): K(f"ds_read_b128 {v(32+4*i,4)}, v5 offset:{1024*i}")
        for i in range(4):
            K(f"s_waitcnt lgkmcnt({3-i})")
            K(f"buffer_store_dwordx4 {v(32+4*i,4)}, v{VA+i}, {sr}, {soff} offen {sc}")
    def stats_store(SX, stoff):
        l = K.newlabel("ss")
        K(f"s_cmp_ge_u32 s{SLW}, 2")
        K(f"s_cbranch_scc1 {l}")
        K(f"s_lshl_b32 s{T0}, s{SLW}, 9")
        K("v_lshlrev_b32 v7, 3, v1")
        K(f"v_add_u32 v6, s{T0}, v7")
        K(f"v_add_u32 v6, {SX}, v6")
        K("ds_read_b64 v[48:49], v6")
        K("ds_read_b64 v[50:51], v6 offset:1024")
        K(f"s_lshl_b32 s{T0+1}, s{S_RB}, 4")
        K(f"s_add_u32 s{T0+1}, s{T0+1}, s{S_CT}")
        K(f"s_lshl_b32 s{T0+1}, s{T0+1}, 10")
        K(f"s_add_u32 s{T0}, s{T0}, s{T0+1}")
        K(f"s_add_u32 s{T0}, s{T0}, {stoff}")
        K("s_waitcnt lgkmcnt(0)")
        K("v_pk_add_f32 v[48:49], v[48:49], v[50:51]")
        K(f"buffer_store_dwordx2 v[48:49], v7, {WS}, s{T0} offen sc1")
        K.label(l)
    g1buf = lambda s_: ((s_ + 2) % G1N) * G1STG
    BAR("B0")
    BAR("B0b")
    STH(8)
    K("v_lshrrev_b32 v176, 1, v1")
    K("v_and_b32 v177, 1, v1")
    K("v_lshlrev_b32 v178, 11, v176")
    K("v_lshl_add_u32 v178, v177, 6, v178")
    K(f"s_lshl_b32 s{T0}, s{S_RB}, 18")
    K(f"s_lshl_b32 s{T0+1}, s{SLW}, 16")
    K(f"s_add_u32 s{T0}, s{T0}, s{T0+1}")
    K(f"s_add_u32 s{T0}, s{T0}, s{SCT7}")
    for i in range(4): K(f"buffer_load_dwordx4 {v(128+4*i,4)}, v178, {srd(S_Q)}, s{T0} offen offset:{16*i}")
    K("v_lshrrev_b32 v179, 3, v1")
    K("v_and_b32 v180, 7, v1")
    K(f"s_movk_i32 s{T0+5}, 6144")
    K("v_lshlrev_b32 v181, 3, v179")
    K(f"v_mul_lo_u32 v181, v181, s{T0+5}")
    K("v_lshl_add_u32 v181, v180, 4, v181")
    K(f"s_mul_i32 s{T0+6}, s{S_RB}, {64*6144}")
    K(f"s_add_u32 s{T0+6}, s{T0+6}, s{SCT7}")
    K(f"s_min_u32 s{T0+7}, s{SLW}, 2")
    K(f"s_lshl_b32 s{T0+7}, s{T0+7}, 11")
    K(f"s_add_u32 s{T0+6}, s{T0+6}, s{T0+7}")
    for i in range(8):
        K(f"buffer_load_dwordx4 {v(144+4*i,4)}, v181, {srd(S_WQKV)}, s{T0+6} offen")
        if i < 7: K(f"s_add_u32 s{T0+6}, s{T0+6}, 6144")
    K(f"s_mov_b32 s{SIB}, s{S_CT}")
    issueW(g1buf(0)); issueW(g1buf(1))
    K("v_lshlrev_b32 v182, 11, v179")
    K("v_lshl_add_u32 v182, v180, 4, v182")
    K(f"s_lshl_b32 s{T0+6}, s{S_RB}, 17")
    K(f"s_lshl_b32 s{T0+7}, s{SLW}, 15")
    K(f"s_add_u32 s{T0+6}, s{T0+6}, s{T0+7}")
    K(f"s_add_u32 s{T0+6}, s{T0+6}, s{SCT7}")
    K(f"buffer_load_dwordx4 v[208:211], v182, {srd(S_WO)}, s{T0+6} offen")
    K(f"s_add_u32 s{T0+6}, s{T0+6}, 16384")
    K(f"buffer_load_dwordx4 v[212:215], v182, {srd(S_WO)}, s{T0+6} offen")
    K("s_waitcnt vmcnt(22)")
    for i in range(16):
        t = 56 + 2*(i & 3)
        K(f"v_lshlrev_b32 v{t}, 16, v{128+i}")
        K(f"v_and_b32 v{t+1}, 0xffff0000, v{128+i}")
        acc_stats(i < 2, i & 1, t)
    K(f"v_pk_add_f32 v[{S2[0]}:{S2[0]+1}], v[{S2[0]}:{S2[0]+1}], v[{S2[1]}:{S2[1]+1}]")
    K(f"v_pk_add_f32 v[{Q2[0]}:{Q2[0]+1}], v[{Q2[0]}:{Q2[0]+1}], v[{Q2[1]}:{Q2[1]+1}]")
    K(f"v_add_f32 v44, v{S2[0]}, v{S2[0]+1}")
    K(f"v_add_f32 v45, v{Q2[0]}, v{Q2[0]+1}")
    K(f"s_lshl_b32 s{T0}, s{S_RB}, 4")
    K(f"s_add_u32 s{T0}, s{T0}, s{S_CT}")
    K("v_add_f32_dpp v44, v44, v44 quad_perm:[1,0,3,2] row_mask:0xf bank_mask:0xf")
    K("v_add_f32_dpp v45, v45, v45 quad_perm:[1,0,3,2] row_mask:0xf bank_mask:0xf")
    K(f"s_lshl_b32 s{T0}, s{T0}, 10")
    K(f"s_lshl_b32 s{T0+1}, s{SLW}, 8")
    K(f"s_add_u32 s{T0}, s{T0}, s{T0+1}")
    K(f"s_add_u32 s{T0}, s{T0}, {WS_STQ:#x}")
    K("v_lshlrev_b32 v46, 3, v176")
    K("v_cmp_eq_u32 vcc, 0, v177")
    K("s_and_saveexec_b64 s[90:91], vcc")
    K(f"buffer_store_dwordx2 v[44:45], v46, {WS}, s{T0} offen sc1")
    K("s_mov_b64 exec, s[90:91]")
    K(f"s_cmp_eq_u32 s{SLW}, 3")
    K("s_cbranch_scc1 L_nocs")
    K("s_waitcnt vmcnt(15)")
    for dw in range(4):
        for i in range(8):
            src_ = 144 + 4*i + dw
            t = 190 + 2*dw if i == 0 else 184 + 2*(i % 3)
            K(f"v_lshlrev_b32 v{t}, 16, v{src_}")
            K(f"v_and_b32 v{t+1}, 0xffff0000, v{src_}")
            if i: K(f"v_pk_add_f32 v[{190+2*dw}:{191+2*dw}], v[{190+2*dw}:{191+2*dw}], v[{t}:{t+1}]")
    K("s_nop 1")
    for c in range(8): K(f"v_add_f32_dpp v{190+c}, v{190+c}, v{190+c} row_ror:8 row_mask:0xf bank_mask:0xf")
    for c in range(8): K(f"v_mov_b32 v{200+c}, v{190+c}")
    K("s_nop 1")
    for c in range(8): K(f"v_permlane16_swap_b32 v{200+c}, v{190+c}")
    K("s_nop 1")
    for c in range(8): K(f"v_add_f32 v{190+c}, v{190+c}, v{200+c}")
    for c in range(8): K(f"v_mov_b32 v{200+c}, v{190+c}")
    K("s_nop 1")
    for c in range(8): K(f"v_permlane32_swap_b32 v{200+c}, v{190+c}")
    K("s_nop 1")
    for c in range(8): K(f"v_add_f32 v{190+c}, v{190+c}, v{200+c}")
    K(f"s_lshl_b32 s{T0+6}, s{S_CT}, 4")
    K(f"s_add_u32 s{T0+6}, s{T0+6}, s{S_RB}")
    K(f"s_mul_i32 s{T0+6}, s{T0+6}, 768")
    K(f"s_lshl_b32 s{T0+5}, s{SLW}, 8")
    K(f"s_add_u32 s{T0+6}, s{T0+6}, s{T0+5}")
    K(f"s_add_u32 s{T0+6}, s{T0+6}, {WS_CSP:#x}")
    K("v_lshlrev_b32 v10, 5, v1")
    K("v_cmp_gt_u32 vcc, 8, v1")
    K("s_and_saveexec_b64 s[90:91], vcc")
    K(f"buffer_store_dwordx4 v[190:193], v10, {WS}, s{T0+6} offen sc1")
    K(f"buffer_store_dwordx4 v[194:197], v10, {WS}, s{T0+6} offen offset:16 sc1")
    K("s_mov_b64 exec, s[90:91]")
    K.label("L_nocs")
    STH(4)
    K("s_waitcnt vmcnt(0)")
    BAR("A1")
    STH(9)
    master([("col", C_Y), ("row", R_QST)], [("col", C_Y), ("row", R_QST)])
    STH(10)
    BAR("B1")
    K("v_lshrrev_b32 v5, 4, v1")
    K("v_lshlrev_b32 v5, 12, v5")
    K("v_and_b32 v6, 15, v1")
    K("v_lshl_add_u32 v5, v6, 4, v5")
    K(f"s_lshl_b32 s{T0}, s{S_CT}, 18")
    K(f"s_lshl_b32 s{T0+1}, s{S_RB}, 8")
    K(f"s_add_u32 s{T0}, s{T0}, s{T0+1}")
    K(f"s_lshl_b32 s{T0+1}, s{SLW}, 16")
    K(f"s_add_u32 s{T0}, s{T0}, s{T0+1}")
    K(f"s_add_u32 s{T0}, s{T0}, {WS_YT:#x}")
    K(f"s_lshl_b32 m0, s{SLW}, 12")
    for i in range(4):
        K("s_nop 0")
        K(f"buffer_load_dwordx4 v5, {WS}, s{T0} offen sc1 lds")
        K(f"s_add_u32 s{T0}, s{T0}, 16384")
        if i < 3: K("s_add_u32 m0, m0, 1024")
    issueW(g1buf(2))
    zero_sync(XA_SY)
    K("s_waitcnt vmcnt(6)")
    BAR("C1")
    K.label("L_hlayer")
    BAR("S2")
    SPH = T0+20
    STH(13)
    K(f"s_add_u32 s{SPH}, s{S_XAOFF}, s{SCT7}")
    tile_store4(XA_TB, WS, f"s{SPH}")
    stats_store(XA_SX, f"s{S_STXA}")
    STH(14)
    K(f"s_mul_i32 s{SPH}, s{S_LAYER}, {3*CNT_PH}")
    K(f"s_add_u32 s{SPH+1}, s{SPH}, {R_XA0*CNT_PH}")
    K(f"s_mov_b32 s{SABASE}, s{S_XAOFF}")
    K(f"s_add_u32 s{SIA}, s{S_CT}, 1")
    K(f"s_and_b32 s{SIA}, s{SIA}, 15")
    K("s_waitcnt vmcnt(0)")
    STH(15)
    lds_sync(XA_SY, "row", f"s{SPH+1}")
    STH(16)
    issueA(g1buf(1)); issueA(g1buf(2))
    STH(17)
    K("s_waitcnt vmcnt(4)")
    STH(18)
    K("s_barrier")
    STH(19)
    for i in range(1, 15):
        if i + 2 <= 15:
            issueA(g1buf(i+2)); issueW(g1buf(i+2))
        n = 10 if i <= 13 else 0
        K(f"s_waitcnt vmcnt({n})")
        K("s_barrier")
        if i in (1, 2, 3, 8): STH(19 + min(i, 4))
    bars["H"].append("G1.loop15")
    BAR("X3")
    BAR("A3")
    K(f"s_add_u32 s{SPH+1}, s{S_LAYER}, {C_KVP0}")
    K(f"s_mul_i32 s{SPH+1}, s{SPH+1}, {CNT_PH}")
    master([("col", f"s{SPH+1}")], [("col", f"s{SPH+1}")])
    BAR("B3")
    m_load_sum()
    K(f"s_mov_b32 s{SIB}, s{S_CT}")
    for j in range(G2N-1): issueO(j*G2STG)
    zero_sync(O_SY)
    BAR("C3")
    K("s_waitcnt vmcnt(0)")
    BAR("S4")
    STH(32)
    K(f"s_add_u32 s{SPH+1}, s{S_OOFF}, s{SCT7}")
    tile_store4(O_TB, WS, f"s{SPH+1}")
    K(f"s_add_u32 s{SPH+1}, s{SPH}, {R_O0*CNT_PH}")
    K(f"s_mov_b32 s{SABASE}, s{S_OOFF}")
    K(f"s_add_u32 s{SIA}, s{S_CT}, 1")
    K(f"s_and_b32 s{SIA}, s{SIA}, 15")
    STH(33)
    K("s_waitcnt vmcnt(0)")
    STH(34)
    lds_sync(O_SY, "row", f"s{SPH+1}")
    STH(35)
    issueA(1*G2STG); issueA(2*G2STG)
    K("s_waitcnt vmcnt(4)")
    STH(36)
    K("s_barrier")
    STH(37)
    waits = {1: 8, 2: 10, 13: 6, 14: 0}
    for i in range(1, 15):
        if i == 1:
            issueA(3*G2STG); issueA(4*G2STG)
        elif i + 3 <= 15:
            b = ((i+3) % G2N) * G2STG
            issueA(b); issueO(b)
        K(f"s_waitcnt vmcnt({waits.get(i, 12)})")
        if i in (1, 2, 3, 4, 8, 12): STH(38 + 2*(1,2,3,4,8,12).index(i))
        K("s_barrier")
        if i in (1, 2, 3, 4, 8, 12): STH(39 + 2*(1,2,3,4,8,12).index(i))
    bars["H"].append("G2.loop15")
    BAR("D5")
    K(f"s_cmp_eq_u32 s{S_LAYER}, 1")
    K("s_cbranch_scc1 L_hfinal")
    BAR("S5")
    stats_store(X2_SX, f"{WS_STX2:#x}")
    K("s_waitcnt vmcnt(0)")
    zero_done = True
    K(f"s_mov_b32 s{SPH+1}, {R_X2*CNT_PH}")
    lds_sync(O_SY + 8, "row", f"s{SPH+1}")
    BAR("B5")
    K(f"s_mov_b32 s{SIB}, s{S_CT}")
    for s_ in range(3): issueW(g1buf(s_))
    zero_sync(XA_SY)
    K(f"s_mov_b32 s{S_LAYER}, 1")
    K(f"s_mov_b32 s{S_XAOFF}, {WS_XA[1]:#x}")
    K(f"s_mov_b32 s{S_STXA}, {WS_STXA[1]:#x}")
    K(f"s_mov_b32 s{S_KVPOFF}, {WS_KVP[1]:#x}")
    K(f"s_mov_b32 s{S_OOFF}, {WS_O[1]:#x}")
    K("s_waitcnt vmcnt(0)")
    K("s_branch L_hlayer")
    K.label("L_hfinal")
    K("s_barrier")
    tile_store4(OUT_TB, srd(S_OUT), f"s{SCT7}", sc="")
    if stamp:
        K("s_waitcnt vmcnt(0)")
        STH(12)
        K(f"s_lshl_b32 s{T0}, s2, 3")
        K(f"s_add_u32 s{T0}, s{T0}, s{S_W}")
        K(f"s_lshl_b32 s{T0}, s{T0}, 8")
        K(f"s_add_u32 s{T0}, s{T0}, {200*MB:#x}")
        K("v_lshlrev_b32 v5, 2, v1")
        K(f"buffer_store_dword v{STV}, v5, {WS}, s{T0} offen")
    K.label("L_done")
    K("s_endpgm")
    assert bars["C"] == bars["H"], (bars["C"], bars["H"])
    return K

if __name__ == "__main__":
    stamp = len(sys.argv) > 2 and sys.argv[2] == "stamp"
    K = gen(stamp=stamp)
    hdr = HEADER + f"; @launch grid=(256,1,1) block=(512,1,1) lds={LDS_TOTAL}\n"
    txt = hdr + '.amdgcn_target "amdgcn-amd-amdhsa--gfx950"\n.text\n' + K.text() + '.section .rodata,"a"\n.p2align 6\n' + K.desc()
    open(sys.argv[1], "w").write(txt)
    print(len(txt), "bytes")
```

```python
import sys
from fw import *
MB = 1 << 20
WS_KVT = 0; WS_YT = 4*MB; WS_XA = [8*MB, 12*MB]; WS_O = [16*MB, 20*MB]
WS_KVP = [24*MB, 26*MB]; KVP_STRIDE = 2304
WS_STQ = 30*MB; WS_STXA = [31*MB, 33*MB]; WS_STX2 = 32*MB
WS_CSP = 34*MB; WS_ROWC = 35*MB; WS_COLC = 35*MB + 65536
SZ4 = 4*MB
R_QST, R_XA0, R_O0, R_X2, R_XA1, R_O1 = range(6)
C_KVT, C_Y, C_KVP0, C_KVP1 = range(4)
CNT_PH = 4096
G1STG = 40960; G1N = 4
G2STG = 24576; G2N = 6
LDS_TOTAL = 163840
HE = 0; HO = 4160; UR = 8320; WP = 12928
KVSTAGE = 65536
XA_TB = 2*G1STG; XA_SX = 57344; XA_SY = 59392
O_TB = 0; O_SY = 147456
X3B = 122880; RSTAT = 139264
X2_SX = 57344
OUT_TB = 81920

S_WS = 8; S_K = 12; S_V = 16; S_Q = 20; S_H = 24; S_WQKV = 28; S_WO = 32; S_OUT = 36; S_MISC = 40; S_DBG = 44
S_RB = 48; S_CT = 49; S_W = 50; S_RH = 51; S_CH = 52; S_LAYER = 53
S_XAOFF = 54; S_STXA = 55; S_KVPOFF = 56; S_OOFF = 57; S_ROWCNT = 58; S_COLCNT = 59
T0 = 60
XT = 224; YT = 240
WS = f"s[{S_WS}:{S_WS+3}]"
STV = 31
VM = [16, 18]; VR = [20, 22]; VCS = [17, 19, 21]
VTW = 26
def srd(b): return f"s[{b}:{b+3}]"

MAPB = False
def gen(stamp=False):
    K = Kern("interleave_layers__ssm_conv_h3__linear_attn_block__prompt_kernel", 256, 512, LDS_TOTAL, vgpr=256, sgpr=100)
    bars = {"C": [], "H": []}
    cur = ["C"]
    def BAR(tag, both=False):
        if both: bars["C"].append(tag); bars["H"].append(tag)
        else: bars[cur[0]].append(tag)
        K("s_barrier")
    def ST(i):
        if stamp and cur[0] == "C":
            K("s_memrealtime s[88:89]")
            K(f"s_mul_i32 s92, s{S_LAYER}, 24")
            K(f"s_add_u32 m0, s92, {i}")
            K("s_waitcnt lgkmcnt(0)")
            K(f"v_writelane_b32 v{STV}, s88, m0")
    def STH(i):
        if stamp:
            K("s_memrealtime s[88:89]")
            K("s_waitcnt lgkmcnt(0)")
            K(f"v_writelane_b32 v{STV}, s88, {i}")
    def STC(i):
        if stamp:
            K("s_memtime s[88:89]")
            K("s_waitcnt lgkmcnt(0)")
            K(f"v_writelane_b32 v{STV}, s88, {i}")
    def ALIGN(): K(".p2align 6")
    K("s_cmp_ge_u32 s2, 256")
    K("s_cbranch_scc1 L_done")
    K.ldptr(4, "k"); K.ldptr(6, "v")
    for (r, n) in ((74, "shift_k"), (70, "ws"), (60, "q"), (62, "ssm_k"), (64, "wqkv"), (66, "wo"), (68, "out"), (72, "dbg"), (76, "ssm_D")):
        K.ldptr(r, n)
    K("v_and_b32 v1, 63, v0")
    K("v_lshrrev_b32 v5, 6, v0")
    K("v_and_b32 v2, 31, v1")
    K("v_lshrrev_b32 v3, 5, v1")
    K(f"v_readfirstlane_b32 s{S_W}, v5")
    K("s_and_b32 s78, s2, 7\ns_lshr_b32 s79, s2, 3")
    if MAPB:
        K("s_and_b32 s80, s78, 3\ns_lshl_b32 s80, s80, 2\ns_and_b32 s81, s79, 3")
        K(f"s_add_u32 s{S_RB}, s80, s81")
        K("s_lshr_b32 s80, s78, 2\ns_lshl_b32 s80, s80, 3\ns_lshr_b32 s81, s79, 2")
        K(f"s_add_u32 s{S_CT}, s80, s81")
    else:
        K("s_and_b32 s80, s78, 1\ns_lshl_b32 s80, s80, 3\ns_and_b32 s81, s79, 7")
        K(f"s_add_u32 s{S_RB}, s80, s81")
        K("s_lshr_b32 s80, s78, 1\ns_lshl_b32 s80, s80, 2\ns_lshr_b32 s81, s79, 3")
        K(f"s_add_u32 s{S_CT}, s80, s81")
    K("v_and_b32 v32, 7, v0")
    K("v_lshrrev_b32 v33, 3, v0")
    K(f"s_lshl_b32 s78, s{S_RB}, 18")
    K(f"s_lshl_b32 s79, s{S_CT}, 7")
    K("s_add_u32 s78, s78, s79")
    K("s_sub_u32 s78, s78, 6144")
    K("v_lshlrev_b32 v34, 12, v33")
    K("v_lshl_add_u32 v34, v32, 4, v34")
    K("v_add_u32 v34, s78, v34")
    for j in range(1, 5): K(f"v_add_u32 v{34+j}, {2048*j}, v34")
    K(f"s_lshl_b32 s79, s{S_CT}, 9")
    K("v_lshlrev_b32 v39, 6, v32")
    K("v_add_u32 v39, s79, v39")
    K("s_waitcnt lgkmcnt(0)")
    K.srd(S_K, 4, 0, SZ4); K.srd(S_V, 6, 0, SZ4); K.srd(S_MISC, 74, 0, 8192)
    for j in range(5): K(f"buffer_load_dwordx4 {v(40+4*j,4)}, v{34+j}, {srd(S_K)}, 0 offen")
    for i in range(2): K(f"buffer_load_dwordx4 {v(60+4*i,4)}, v{37+i}, {srd(S_V)}, 0 offen")
    for i in range(4): K(f"buffer_load_dwordx4 {v(68+4*i,4)}, v39, {srd(S_MISC)}, 0 offen offset:{16*i}")
    K.srd(S_WS, 70, 0, 256*MB)
    K.srd(S_Q, 60, 0, SZ4); K.srd(S_H, 62, 0, SZ4)
    K.srd(S_WQKV, 64, 0, 6*MB); K.srd(S_WO, 66, 0, 2*MB); K.srd(S_OUT, 68, 0, SZ4)
    K.srd(S_DBG, 72, 0, 256); K.srd(84, 76, 0, 2048)
    K(f"s_and_b32 s{S_RH}, s{S_W}, 1")
    K(f"s_bfe_u32 s{S_CH}, s{S_W}, 0x10001")
    K(f"s_mov_b32 s{S_LAYER}, 0")
    K(f"s_lshl_b32 s78, s{S_RB}, 8")
    K(f"s_add_u32 s{S_ROWCNT}, s78, {WS_ROWC:#x}")
    K(f"s_lshl_b32 s78, s{S_CT}, 8")
    K(f"s_add_u32 s{S_COLCNT}, s78, {WS_COLC:#x}")
    K(f"s_mov_b32 s{S_XAOFF}, {WS_XA[0]:#x}")
    K(f"s_mov_b32 s{S_STXA}, {WS_STXA[0]:#x}")
    K(f"s_mov_b32 s{S_KVPOFF}, {WS_KVP[0]:#x}")
    K(f"s_mov_b32 s{S_OOFF}, {WS_O[0]:#x}")
    if stamp: K(f"v_mov_b32 v{STV}, 0")
    ST(0); STC(60)
    K(f"s_cmp_eq_u32 s{S_W}, 7")
    K("s_cbranch_scc0 L_noinit")
    K("v_cmp_gt_u32 vcc, 8, v1")
    K("s_and_saveexec_b64 s[90:91], vcc")
    K("v_lshlrev_b32 v5, 12, v1")
    K("v_mov_b32 v6, 0")
    K("v_mov_b32 v7, 1")
    K(f"s_cmp_eq_u32 s{S_CT}, 0")
    K("s_cbranch_scc0 L_init2")
    K(f"buffer_store_dword v6, v5, {WS}, s{S_ROWCNT} offen sc1")
    K("s_waitcnt vmcnt(0)")
    K(f"s_lshl_b32 s{T0}, s{S_RB}, 2")
    K(f"v_mov_b32 v8, s{T0}")
    K(f"buffer_store_dword v7, v8, {srd(S_DBG)}, 0 offen sc1")
    K.label("L_init2")
    K(f"s_cmp_eq_u32 s{S_RB}, 0")
    K("s_cbranch_scc0 L_init3")
    K(f"buffer_store_dword v6, v5, {WS}, s{S_COLCNT} offen sc1")
    K("s_waitcnt vmcnt(0)")
    K(f"s_lshl_b32 s{T0}, s{S_CT}, 2")
    K(f"s_add_u32 s{T0}, s{T0}, 64")
    K(f"v_mov_b32 v8, s{T0}")
    K(f"buffer_store_dword v7, v8, {srd(S_DBG)}, 0 offen sc1")
    K.label("L_init3")
    K("s_mov_b64 exec, s[90:91]")
    K.label("L_noinit")
    K("v_bfe_u32 v8, v2, 1, 3")
    K(f"s_lshl_b32 s{T0}, s{S_CH}, 2")
    K(f"v_add_u32 v9, s{T0}, v3")
    K("v_xor_b32 v8, v8, v9")
    K("v_lshlrev_b32 v8, 4, v8")
    K("v_lshl_add_u32 v8, v2, 7, v8")
    K(f"s_lshl_b32 s{T0}, s{S_RH}, 13")
    K(f"v_add_u32 v{VTW}, s{T0}, v8")
    K("v_sub_u32 v5, 63, v33")
    K("v_lshlrev_b32 v6, 2, v32")
    K("v_xor_b32 v5, v5, v6")
    K("v_lshlrev_b32 v5, 2, v5")
    K("v_lshl_add_u32 v5, v32, 11, v5")
    K(f"v_add_u32 v5, {KVSTAGE}, v5")
    K("s_waitcnt vmcnt(0)")
    STH(1)
    KU, SU, VU, AC = 96, 102, 106, 108
    for dw in range(4):
        b = 96 + 24*(dw & 1)
        for j in range(5):
            K(f"v_lshlrev_b32 v{b+2*j}, 16, v{40+4*j+dw}")
            K(f"v_and_b32 v{b+2*j+1}, 0xffff0000, v{40+4*j+dw}")
        for i in range(2):
            K(f"v_lshlrev_b32 v{b+10+2*i}, 16, v{60+4*i+dw}")
            K(f"v_and_b32 v{b+10+2*i+1}, 0xffff0000, v{60+4*i+dw}")
        t = b + 14
        K(f"v_lshlrev_b32 v{t+0}, 16, v{68+4*dw}")        ; K(f"v_lshlrev_b32 v{t+1}, 16, v{68+4*dw+2}")
        K(f"v_and_b32 v{t+2}, 0xffff0000, v{68+4*dw}")    ; K(f"v_and_b32 v{t+3}, 0xffff0000, v{68+4*dw+2}")
        K(f"v_lshlrev_b32 v{t+4}, 16, v{68+4*dw+1}")      ; K(f"v_lshlrev_b32 v{t+5}, 16, v{68+4*dw+3}")
        K(f"v_and_b32 v{t+6}, 0xffff0000, v{68+4*dw+1}")  ; K(f"v_and_b32 v{t+7}, 0xffff0000, v{68+4*dw+3}")
        a = 144 + 4*(dw & 1)
        for i in range(2): K(f"v_pk_mul_f32 v[{a+2*i}:{a+2*i+1}], v[{b+2*i}:{b+2*i+1}], v[{t+6}:{t+7}]")
        for tap in (2, 1, 0):
            for i in range(2):
                kk = b + 2*(3+i-tap)
                K(f"v_pk_fma_f32 v[{a+2*i}:{a+2*i+1}], v[{kk}:{kk+1}], v[{t+2*tap}:{t+2*tap+1}], v[{a+2*i}:{a+2*i+1}]")
        for i in range(2): K(f"v_pk_mul_f32 v[{a+2*i}:{a+2*i+1}], v[{a+2*i}:{a+2*i+1}], v[{b+10+2*i}:{b+10+2*i+1}]")
        o = 152 + 2*(dw & 1)
        K(f"v_cvt_pk_bf16_f32 v{o}, v{a+2}, v{a+0}")
        K(f"v_cvt_pk_bf16_f32 v{o+1}, v{a+3}, v{a+1}")
        K(f"ds_write_b32 v5, v{o} offset:{(2*dw)*256}")
        K(f"ds_write_b32 v5, v{o+1} offset:{(2*dw+1)*256}")
    K("s_waitcnt lgkmcnt(0)")
    BAR("S0", both=True)
    K("v_lshrrev_b32 v6, 4, v1")
    K("v_and_b32 v7, 15, v1")
    K(f"s_lshl_b32 s{T0}, s{S_W}, 3")
    K(f"v_add_u32 v6, s{T0}, v6")
    K(f"v_mov_b32 v8, s{S_W}")
    K("v_xor_b32 v8, v8, v7")
    K("v_lshlrev_b32 v8, 4, v8")
    K("v_lshl_add_u32 v8, v6, 8, v8")
    K(f"v_add_u32 v8, {KVSTAGE}, v8")
    K("ds_read_b128 v[40:43], v8")
    K("ds_read_b128 v[44:47], v8 offset:1024")
    K(f"s_lshl_b32 s{T0+1}, s{S_CT}, 18")
    K(f"s_add_u32 s{T0+2}, s{S_RB}, 1")
    K(f"s_lshl_b32 s{T0+2}, s{T0+2}, 8")
    K(f"s_sub_u32 s{T0+2}, 4096, s{T0+2}")
    K(f"s_add_u32 s{T0+1}, s{T0+1}, s{T0+2}")
    K(f"s_add_u32 s{T0+2}, s{T0+1}, 16384")
    K("v_lshlrev_b32 v9, 12, v6")
    K("v_lshl_add_u32 v9, v7, 4, v9")
    K("s_waitcnt lgkmcnt(1)")
    K(f"buffer_store_dwordx4 v[40:43], v9, {WS}, s{T0+1} offen sc1")
    K("s_waitcnt lgkmcnt(0)")
    K(f"buffer_store_dwordx4 v[44:47], v9, {WS}, s{T0+2} offen sc1")
    K(f"s_cmp_ge_u32 s{S_W}, 4")
    K("s_cbranch_scc1 L_helper")

    def tile_write(TB, regs):
        K(f"v_add_u32 v5, {TB}, v{VTW}")
        K("v_xor_b32 v6, 32, v5")
        for rt in range(2):
            for qq in range(2):
                K(f"ds_write_b128 v{5+qq}, {v(regs+8*rt+4*qq,4)} offset:{rt*4096}")
    def stats_to_lds(S2, Q2, SX):
        T = 40
        for rt in range(2):
            K(f"v_add_f32 v{T+2*rt}, v{S2[rt]}, v{S2[rt]+1}")
            K(f"v_add_f32 v{T+2*rt+1}, v{Q2[rt]}, v{Q2[rt]+1}")
        for j in range(4): K(f"v_mov_b32 v{T+4+j}, v{T+j}")
        K(f"s_lshl_b32 s{T0}, s{S_RH}, 9")
        K(f"s_lshl_b32 s{T0+1}, s{S_CH}, 10")
        for j in range(4): K(f"v_permlane32_swap_b32 v{T+4+j}, v{T+j}")
        K("v_cmp_eq_u32 vcc, 1, v3")
        K(f"s_add_u32 s{T0}, s{T0}, s{T0+1}")
        K(f"s_add_u32 s{T0}, s{T0}, {SX}")
        for j in range(4): K(f"v_add_f32 v{T+j}, v{T+j}, v{T+4+j}")
        K(f"v_cndmask_b32 v{T+8}, v{T}, v{T+2}, vcc")
        K(f"v_cndmask_b32 v{T+9}, v{T+1}, v{T+3}, vcc")
        K("v_lshlrev_b32 v7, 3, v1")
        K(f"v_add_u32 v7, s{T0}, v7")
        K(f"ds_write_b64 v7, v[{T+8}:{T+9}]")
    def stats_load(stoff, R):
        K(f"s_lshl_b32 s{T0}, s{S_RB}, 14")
        K(f"s_lshl_b32 s{T0+1}, s{S_RH}, 9")
        K(f"s_add_u32 s{T0}, s{T0}, s{T0+1}")
        K(f"s_add_u32 s{T0}, s{T0}, {stoff}")
        K("v_lshlrev_b32 v5, 13, v3")
        K("v_lshl_add_u32 v5, v2, 3, v5")
        for j in range(8):
            for rt in range(2):
                K(f"buffer_load_dwordx2 v[{R+16*rt+2*j}:{R+16*rt+2*j+1}], v5, {WS}, s{T0} offen offset:{rt*256} sc1")
            if j < 7: K(f"s_add_u32 s{T0}, s{T0}, 1024")
    def stats_reduce(R):
        for j in range(1, 8):
            for rt in range(2):
                b = R + 16*rt
                K(f"v_pk_add_f32 v[{b}:{b+1}], v[{b}:{b+1}], v[{b+2*j}:{b+2*j+1}]")
        for rt in range(2):
            b = R + 16*rt
            K(f"v_mov_b32 v{b+2}, v{b}")
            K(f"v_mov_b32 v{b+3}, v{b+1}")
        K(f"s_mov_b32 s{T0}, 0x3a800000")
        K(f"s_mov_b32 s{T0+1}, 0x3727c5ac")
        for rt in range(2):
            b = R + 16*rt
            K(f"v_permlane32_swap_b32 v{b+2}, v{b}")
            K(f"v_permlane32_swap_b32 v{b+3}, v{b+1}")
        K("s_nop 0")
        for rt in range(2):
            b = R + 16*rt
            K(f"v_pk_add_f32 v[{b}:{b+1}], v[{b}:{b+1}], v[{b+2}:{b+3}]")
        for rt in range(2):
            b = R + 16*rt
            K(f"v_mul_f32 v{VM[rt]}, s{T0}, v{b}")
            K(f"v_mul_f32 v{b+1}, s{T0}, v{b+1}")
        for rt in range(2):
            b = R + 16*rt
            K(f"v_fma_f32 v{b+1}, -v{VM[rt]}, v{VM[rt]}, v{b+1}")
            K(f"v_max_f32 v{b+1}, 0, v{b+1}")
            K(f"v_add_f32 v{b+1}, s{T0+1}, v{b+1}")
            K(f"v_rsq_f32 v{VR[rt]}, v{b+1}")
        K("s_nop 0")
    S2 = [48, 52]; Q2 = [50, 54]
    def acc_stats(first, rt, P):
        if first:
            K(f"v_pk_mul_f32 v[{Q2[rt]}:{Q2[rt]+1}], v[{P}:{P+1}], v[{P}:{P+1}]")
            K(f"v_mov_b32 v{S2[rt]}, v{P}")
            K(f"v_mov_b32 v{S2[rt]+1}, v{P+1}")
        else:
            K(f"v_pk_fma_f32 v[{Q2[rt]}:{Q2[rt]+1}], v[{P}:{P+1}], v[{P}:{P+1}], v[{Q2[rt]}:{Q2[rt]+1}]")
            K(f"v_pk_add_f32 v[{S2[rt]}:{S2[rt]+1}], v[{S2[rt]}:{S2[rt]+1}], v[{P}:{P+1}]")
    def e_phase():
        n = 0
        for i in range(8):
            for rt in range(2):
                t = 56 + 6*(n % 4); n += 1
                x = XT + 8*rt + i; y = YT + 8*rt + i
                K(f"v_lshlrev_b32 v{t}, 16, v{x}")
                K(f"v_and_b32 v{t+1}, 0xffff0000, v{x}")
                K(f"v_lshlrev_b32 v{t+2}, 16, v{y}")
                K(f"v_and_b32 v{t+3}, 0xffff0000, v{y}")
                K(f"v_pk_add_f32 v[{t+4}:{t+5}], v[{t}:{t+1}], v[{VM[rt]}:{VM[rt]+1}] op_sel_hi:[1,0] neg_lo:[0,1] neg_hi:[0,1]")
                K(f"v_pk_mul_f32 v[{t+4}:{t+5}], v[{t+4}:{t+5}], v[{VR[rt]}:{VR[rt]+1}] op_sel_hi:[1,0]")
                K(f"v_pk_fma_f32 v[{t}:{t+1}], v[{t+4}:{t+5}], v[{t+2}:{t+3}], v[{t}:{t+1}]")
                acc_stats(i == 0, rt, t)
                K(f"v_cvt_pk_bf16_f32 v{x}, v{t}, v{t+1}")
    def baddr(dst, base):
        K("v_bfe_u32 v13, v1, 4, 1")
        K("v_bfe_u32 v14, v1, 2, 2")
        K("v_and_b32 v15, 3, v1")
        K(f"v_lshlrev_b32 v{dst}, 1, v13")
        K("v_lshrrev_b32 v13, 1, v15")
        K(f"v_add_u32 v{dst}, v{dst}, v13")
        K(f"s_lshl_b32 s{T0}, s{S_CH}, 2")
        K(f"v_add_u32 v{dst}, s{T0}, v{dst}")
        K("v_bfe_u32 v13, v14, 1, 1")
        K("v_lshlrev_b32 v13, 2, v13")
        K(f"v_xor_b32 v{dst}, v{dst}, v13")
        K(f"v_lshlrev_b32 v{dst}, 4, v{dst}")
        K("v_and_b32 v13, 1, v15")
        K(f"v_lshl_add_u32 v{dst}, v13, 3, v{dst}")
        K("v_lshl_add_u32 v13, v3, 3, v14")
        K(f"v_lshl_add_u32 v{dst}, v13, 7, v{dst}")
    def aaddr0(dst):
        K(f"v_bfe_u32 v{dst}, v2, 1, 3")
        K(f"v_xor_b32 v{dst}, v{dst}, v3")
        K(f"v_lshlrev_b32 v{dst}, 4, v{dst}")
        K(f"v_lshl_add_u32 v{dst}, v2, 7, v{dst}")
        K(f"s_lshl_b32 s{T0}, s{S_RH}, 13")
        K(f"v_add_u32 v{dst}, s{T0}, v{dst}")
    VA0 = 27; VB0 = 28
    def set_addr(abase, bbase):
        K(f"v_add_u32 v8, {abase}, v{VA0}")
        for ks in range(1, 4): K(f"v_xor_b32 v{8+ks}, {ks<<5}, v8")
        K(f"v_add_u32 v12, {bbase}, v{VB0}")
    def MSLs():
        K(f"s_lshr_b32 s{T0+3}, s{S_W}, 1")
        K(f"s_add_u32 s{T0+3}, s{T0+3}, 1")
        K(f"s_mul_i32 s{T0+3}, s{T0+3}, 24576")
        K(f"s_lshl_b32 s{T0+4}, s{S_RH}, 13")
        K(f"s_add_u32 s{T0+3}, s{T0+3}, s{T0+4}")
    def m_load_sum():
        K(f"s_lshl_b32 s{T0}, s{S_CT}, 1")
        K(f"s_add_u32 s{T0}, s{T0}, s{S_CH}")
        K(f"s_lshl_b32 s{T0}, s{T0}, 4")
        K(f"s_lshr_b32 s{T0+1}, s{S_W}, 2")
        K(f"s_lshl_b32 s{T0+1}, s{T0+1}, 1")
        K(f"s_add_u32 s{T0+1}, s{T0+1}, s{S_RH}")
        K(f"s_lshl_b32 s{T0+1}, s{T0+1}, 2")
        K(f"s_add_u32 s{T0}, s{T0}, s{T0+1}")
        K(f"s_mul_i32 s{T0}, s{T0}, {KVP_STRIDE}")
        K(f"s_add_u32 s{T0}, s{T0}, s{S_KVPOFF}")
        K("v_lshlrev_b32 v6, 4, v1")
        K("v_lshlrev_b32 v7, 2, v2")
        K("v_add_u32 v7, 2048, v7")
        T = 128; Z = 48
        for p in range(4):
            for h in range(2):
                K(f"buffer_load_dwordx4 {v(T+8*p+4*h,4)}, v6, {WS}, s{T0} offen offset:{h*1024} sc1")
            K(f"buffer_load_dword v{Z+p}, v7, {WS}, s{T0} offen sc1")
            if p < 3: K(f"s_add_u32 s{T0}, s{T0}, {KVP_STRIDE}")
        MSLs()
        K(f"v_add_u32 v13, s{T0+3}, v6")
        K("v_lshlrev_b32 v14, 2, v1")
        K(f"v_add_u32 v14, s{T0+3}, v14")
        for p in range(4):
            K(f"s_waitcnt vmcnt({3*(3-p)})")
            for i in range(8):
                r = T + 8*p + i
                if p == 0:
                    K(f"v_lshlrev_b32 v{32+2*i}, 16, v{r}")
                    K(f"v_and_b32 v{33+2*i}, 0xffff0000, v{r}")
                else:
                    t = 52 + 2*(i & 1)
                    K(f"v_lshlrev_b32 v{t}, 16, v{r}")
                    K(f"v_and_b32 v{t+1}, 0xffff0000, v{r}")
                    K(f"v_pk_add_f32 v[{32+2*i}:{33+2*i}], v[{32+2*i}:{33+2*i}], v[{t}:{t+1}]")
        for p in range(1, 4): K(f"v_add_f32 v{Z}, v{Z}, v{Z+p}")
        for qd in range(4): K(f"ds_write_b128 v13, {v(32+4*qd,4)} offset:{qd*1024}")
        K(f"ds_write_b32 v14, v{Z} offset:4096")
        K("s_waitcnt lgkmcnt(0)")

    cur[0] = "C"
    K("s_waitcnt vmcnt(0)")
    ST(1)
    BAR("A0")
    HR = 128
    SD, SDO, SLB = T0+10, T0+11, T0+12
    K(f"s_lshl_b32 s{SD}, s{S_CT}, 6")
    K(f"s_lshl_b32 s{SDO}, s{S_RB}, 2")
    K(f"s_add_u32 s{SD}, s{SD}, s{SDO}")
    K(f"s_add_u32 s{SD}, s{SD}, s{S_W}")
    K(f"s_lshl_b32 s{SDO}, s{SD}, 12")
    K(f"s_mul_i32 s{SLB}, s{S_W}, {WP}")
    K("v_lshlrev_b32 v6, 4, v1")
    for j in range(4): K(f"buffer_load_dwordx4 {v(HR+4*j,4)}, v6, {srd(S_H)}, s{SDO} offen offset:{1024*j}")
    for j in range(4): K(f"buffer_load_dword v{HR+16+j}, v6, {srd(S_H)}, s{SDO} offen offset:{1024*j+16}")
    K(f"s_lshl_b32 s{T0+5}, s{SD}, 1")
    K(f"v_mov_b32 v150, s{T0+5}")
    K("buffer_load_ushort v148, v150, s[84:87], 0 offen")
    K("v_lshlrev_b32 v4, 11, v2")
    K("v_lshl_add_u32 v4, v3, 4, v4")
    K(f"s_lshl_b32 s{T0}, s{S_RB}, 18")
    K(f"s_lshl_b32 s{T0+1}, s{S_RH}, 17")
    K(f"s_add_u32 s{T0}, s{T0}, s{T0+1}")
    K(f"s_lshl_b32 s{T0+1}, s{S_CT}, 7")
    K(f"s_add_u32 s{T0}, s{T0}, s{T0+1}")
    K(f"s_lshl_b32 s{T0+1}, s{S_CH}, 6")
    K(f"s_add_u32 s{T0+8}, s{T0}, s{T0+1}")
    K(f"s_add_u32 s{T0+9}, s{T0+8}, 0x10000")
    aaddr0(VA0); baddr(VB0, 0)
    K(f"v_add_u32 v7, s{SLB}, v6")
    K("v_mov_b32 v88, 0\nv_mov_b32 v89, 0\nv_mov_b32 v90, 0\nv_mov_b32 v91, 0")
    K("v_cmp_gt_u32 vcc, 2, v1")
    K("s_and_saveexec_b64 s[90:91], vcc")
    K(f"ds_write_b128 v7, v[88:91] offset:{HE}")
    K(f"ds_write_b128 v7, v[88:91] offset:{HO}")
    K("s_mov_b64 exec, s[90:91]")
    K("v_cmp_gt_u32 vcc, 30, v1")
    K("s_and_saveexec_b64 s[90:91], vcc")
    K(f"ds_write_b128 v7, v[88:91] offset:{UR+4096}")
    K("s_mov_b64 exec, s[90:91]")
    K("v_and_b32 v5, 15, v1")
    K("v_lshrrev_b32 v13, 4, v1")
    K("v_lshrrev_b32 v8, 1, v5")
    K("v_lshl_add_u32 v8, v13, 2, v8")
    K("v_lshlrev_b32 v8, 2, v8")
    K("v_and_b32 v9, 1, v5")
    K(f"v_mov_b32 v10, {HO}")
    K(f"v_mov_b32 v11, {HE + 4}")
    K("v_cmp_eq_u32 vcc, 1, v9")
    K("s_nop 1")
    K("v_cndmask_b32 v10, v10, v11, vcc")
    K("v_add_u32 v8, v8, v10")
    K(f"v_add_u32 v8, s{SLB}, v8")
    AR = [8, 9, 10, 11]
    for m in range(1, 4): K(f"v_add_u32 v{AR[m]}, {1024*m}, v8")
    K("v_lshlrev_b32 v12, 4, v13")
    K("v_lshlrev_b32 v14, 5, v5")
    K("v_sub_u32 v12, v12, v14")
    K(f"v_add_u32 v12, {UR + 4032 + 32 - 512*7}, v12")
    K(f"v_add_u32 v12, s{SLB}, v12")
    CACC = 32
    for i in range(32): K(f"v_mov_b32 v{CACC+i}, 0")
    K("s_waitcnt vmcnt(0)")
    for j in range(4): K(f"ds_write_b128 v7, {v(HR+4*j,4)} offset:{HE+32+1024*j}")
    for j in range(4):
        b = HR + 4*j; o = 92 + 4*(j & 1)
        K(f"v_alignbit_b32 v{o}, v{b+1}, v{b}, 16")
        K(f"v_alignbit_b32 v{o+1}, v{b+2}, v{b+1}, 16")
        K(f"v_alignbit_b32 v{o+2}, v{b+3}, v{b+2}, 16")
        K(f"v_alignbit_b32 v{o+3}, v{HR+16+j}, v{b+3}, 16")
        K(f"ds_write_b128 v7, {v(o,4)} offset:{HO+32+1024*j}")
    K(f"v_lshlrev_b32 v88, 16, v{HR}")
    K("v_cmp_eq_u32 vcc, 0, v1")
    K("s_and_saveexec_b64 s[90:91], vcc")
    K(f"ds_write_b32 v7, v88 offset:{HO+28}")
    K("s_mov_b64 exec, s[90:91]")
    K("v_lshlrev_b32 v30, 16, v148")
    BAR("B0")
    ST(2); STC(52)
    for j in range(4):
        K(f"buffer_load_dwordx4 {v(64+4*j,4)}, v6, {WS}, s{SDO} offen offset:{1024*j} sc1")
    K("s_waitcnt vmcnt(0)")
    BAR("B0b")
    for j in range(4): K(f"ds_write_b128 v7, {v(64+4*j,4)} offset:{UR+1024*j}")
    for rt in range(2):
        for qq in range(2):
            K(f"buffer_load_dwordx4 {v(XT+8*rt+4*qq,4)}, v4, {srd(S_Q)}, s{T0+8+rt} offen offset:{32*qq}")
    K("s_waitcnt lgkmcnt(0)")
    SET = [64, 128]
    def cloads(c0, st):
        ins = []
        for c1 in range(8):
            o = 16*c0 + 128*(c1 & 1)
            ins.append(f"ds_read_b128 {v(st+32+4*c1,4)}, v12 offset:{512*(7-c1)+64*c0}")
            ins.append(f"ds_read2_b32 {v(st+4*c1,2)}, v{AR[c1>>1]} offset0:{o} offset1:{o+1}")
            ins.append(f"ds_read2_b32 {v(st+4*c1+2,2)}, v{AR[c1>>1]} offset0:{o+2} offset1:{o+3}")
        return ins
    for x in cloads(0, SET[0]): K(x)
    K(f"s_mov_b32 s{T0+5}, 0")
    ALIGN()
    K.label("L_conv")
    for half in range(2):
        st = SET[half]
        nxt = cloads(half+1, SET[half ^ 1])
        K("s_waitcnt lgkmcnt(0)")
        n = 0
        for c1 in range(8):
            for g in range(c1, 8):
                K(f"v_mfma_f32_16x16x32_bf16 {v(CACC+4*g,4)}, {v(st+4*c1,4)}, {v(st+32+4*(g-c1),4)}, {v(CACC+4*g,4)}")
                if n < len(nxt): K(nxt[n])
                n += 1
    for r in AR + [12]: K(f"v_add_u32 v{r}, 128, v{r}")
    K(f"s_add_u32 s{T0+5}, s{T0+5}, 1")
    K(f"s_cmp_lt_u32 s{T0+5}, 4")
    K("s_cbranch_scc1 L_conv")
    K("s_waitcnt lgkmcnt(0)")
    ST(3); STC(53)
    K("v_lshlrev_b32 v12, 3, v13")
    K("v_add_u32 v12, v12, v14")
    K(f"v_sub_u32 v8, {UR + 4088 - 512*7}, v12")
    K(f"v_add_u32 v8, s{SLB}, v8")
    for g in range(8): K(f"ds_read_b64 {v(64+2*g,2)}, v8 offset:{512*(7-g)}")
    K(f"s_add_u32 s{T0+5}, s{SDO}, {WS_YT:#x}")
    K(f"v_add_u32 v13, s{SLB}, v12")
    for g in range(8):
        a = CACC + 4*g; kd = 64 + 2*g; b = 96 + 16*(g & 1)
        K(f"s_waitcnt lgkmcnt({min(7-g,7) if g < 1 else 7})" if False else f"s_waitcnt lgkmcnt({7})" if g == 0 else "s_nop 0") if False else None
        if g == 0: K("s_waitcnt lgkmcnt(0)")
        K(f"v_and_b32 v{b}, 0xffff0000, v{kd+1}")
        K(f"v_lshlrev_b32 v{b+1}, 16, v{kd+1}")
        K(f"v_and_b32 v{b+2}, 0xffff0000, v{kd}")
        K(f"v_lshlrev_b32 v{b+3}, 16, v{kd}")
        K(f"v_pk_fma_f32 v[{b}:{b+1}], v[{b}:{b+1}], v[30:31], v[{a}:{a+1}] op_sel_hi:[1,0,1]")
        K(f"v_pk_fma_f32 v[{b+2}:{b+3}], v[{b+2}:{b+3}], v[30:31], v[{a+2}:{a+3}] op_sel_hi:[1,0,1]")
        K(f"v_cvt_pk_bf16_f32 v{b+12}, v{b}, v{b+1}\nv_cvt_pk_bf16_f32 v{b+13}, v{b+2}, v{b+3}")
        K(f"ds_write_b64 v13, {v(b+12,2)} offset:{512*g}")
    K("v_lshlrev_b32 v6, 4, v1")
    K(f"v_add_u32 v7, s{SLB}, v6")
    K("s_waitcnt lgkmcnt(0)")
    for j in range(4): K(f"ds_read_b128 {v(64+4*j,4)}, v7 offset:{1024*j}")
    for j in range(4):
        K(f"s_waitcnt lgkmcnt({3-j})")
        K(f"buffer_store_dwordx4 {v(64+4*j,4)}, v6, {WS}, s{T0+5} offen offset:{1024*j} sc1")
    ST(4)
    K("s_waitcnt vmcnt(0)")
    BAR("A1"); BAR("B1")
    ST(5)
    stats_load(f"{WS_STQ:#x}", 64)
    K("v_bfe_u32 v5, v1, 2, 2")
    K("v_lshl_add_u32 v5, v3, 3, v5")
    K("v_lshlrev_b32 v5, 8, v5")
    K("v_bfe_u32 v6, v1, 4, 1")
    K("v_lshl_add_u32 v5, v6, 5, v5")
    K("v_and_b32 v6, 3, v1")
    K("v_lshl_add_u32 v5, v6, 3, v5")
    K(f"s_lshl_b32 s{T0}, s{S_CH}, 13")
    K(f"s_lshl_b32 s{T0+1}, s{S_RH}, 7")
    K(f"s_add_u32 s{T0}, s{T0}, s{T0+1}")
    K(f"v_add_u32 v5, s{T0}, v5")
    K("s_waitcnt vmcnt(0)")
    stats_reduce(64)
    BAR("C1")
    for rt in range(2):
        for qq in range(2):
            for t in range(2):
                K(f"ds_read_b64_tr_b16 {v(YT+8*rt+4*qq+2*t,2)}, v5 offset:{(16*qq+4*t)*256 + rt*64}")
    K("s_waitcnt lgkmcnt(0)")
    K.label("L_etail")
    e_phase()
    tile_write(XA_TB, XT)
    stats_to_lds(S2, Q2, XA_SX)
    set_addr(XA_TB, XA_TB + 16384)
    AA = [8, 9, 10, 11]; BA = 12
    ACC = 128; FR = [32, 52]
    K(f"s_mov_b32 s{T0+2}, {G1STG}")
    K(f"s_mov_b32 s{T0+3}, 0")
    K(f"s_mov_b32 s{T0+4}, 2")
    K("s_waitcnt lgkmcnt(0)")
    ST(6)
    BAR("S2")
    ST(8); STC(50)
    def reads(st_regs, ks):
        r = []
        for rt in range(2): r.append(f"ds_read_b128 {v(st_regs+4*rt,4)}, v{AA[ks]} offset:{rt*4096}")
        for sl in range(3):
            for t in range(2):
                r.append(f"ds_read_b64_tr_b16 {v(st_regs+8+4*sl+2*t,2)}, v{BA} offset:{sl*8192+ks*2048+t*512}")
        return r
    def mfmas(st_regs, zero=False):
        m = []
        for rt in range(2):
            A = v(st_regs+4*rt, 4)
            for sl in range(3):
                B = v(st_regs+8+4*sl, 4); acc = v(ACC + 16*(2*sl+rt), 16)
                c = "0" if zero else acc
                if sl == 0: m.append(f"v_mfma_f32_32x32x16_bf16 {acc}, {B}, {A}, {c}")
                else:       m.append(f"v_mfma_f32_32x32x16_bf16 {acc}, {A}, {B}, {c}")
        return m
    def interleave(ms, rs):
        return [ms[0]] + rs[:2] + [ms[1]] + rs[2:4] + [ms[2]] + rs[4:6] + [ms[3]] + rs[6:] + ms[4:]
    for x in reads(FR[0], 0): K(x)
    K("s_waitcnt lgkmcnt(0)")
    for x in interleave(mfmas(FR[0], zero=True), reads(FR[1], 1)): K(x)
    ALIGN()
    K.label("L_g1loop")
    for ks in (1, 2, 3, 0):
        c_ = FR[ks & 1]; n_ = FR[(ks+1) & 1]
        if ks == 3:
            K(f"s_add_u32 s{T0+4}, s{T0+4}, 1")
            K(f"s_cmp_eq_u32 s{T0+4}, {G1N}")
            K(f"s_cselect_b32 s{T0+5}, {(-(G1N-1)*G1STG) & 0xffffffff:#x}, s{T0+2}")
            K(f"s_cselect_b32 s{T0+4}, 0, s{T0+4}")
            K(f"s_add_u32 s{T0+3}, s{T0+3}, 1")
            K(f"s_cmp_eq_u32 s{T0+3}, 16")
        K("s_waitcnt lgkmcnt(0)")
        if ks == 3:
            K("s_cbranch_scc1 L_g1last")
            for r in AA + [BA]: K(f"v_add_u32 v{r}, s{T0+5}, v{r}")
            K("s_barrier")
            K(f"s_cmp_eq_u32 s{T0+3}, 1")
            K("s_cbranch_scc1 L_g1st")
            K.label("L_g1stb")
            for x in interleave(mfmas(c_), reads(n_, 0)): K(x)
        elif ks == 0:
            for x in interleave(mfmas(c_), reads(n_, 1)): K(x)
            K("s_branch L_g1loop")
        else:
            for x in interleave(mfmas(c_), reads(n_, ks+1)): K(x)
    K.label("L_g1st")
    stats_load(f"s{S_STXA}", 72)
    lcs = K.newlabel("cs")
    K(f"s_cmp_eq_u32 s{S_LAYER}, 0")
    K(f"s_cbranch_scc0 {lcs}")
    K(f"s_mul_i32 s{T0}, s{S_CT}, {16*768}")
    K(f"s_add_u32 s{T0}, s{T0}, {WS_CSP:#x}")
    K(f"s_lshl_b32 s{T0+1}, s{S_CH}, 7")
    K(f"s_add_u32 s{T0}, s{T0}, s{T0+1}")
    K("v_lshlrev_b32 v5, 2, v2")
    K("v_mul_u32_u24 v6, 6144, v3")
    K("v_add_u32 v5, v5, v6")
    CS = 104
    for j in range(8):
        for sl in range(3):
            K(f"buffer_load_dword v{CS+3*j+sl}, v5, {WS}, s{T0} offen offset:{sl*256} sc1")
        if j < 7: K(f"s_add_u32 s{T0}, s{T0}, 768")
    K.label(lcs)
    K("s_branch L_g1stb")
    K.label("L_g1last")
    for x in mfmas(FR[1]): K(x)
    bars["C"].append("G1.loop15")
    ST(9); STC(51)
    K("s_waitcnt vmcnt(0)")
    stats_reduce(72)
    lcr = K.newlabel("cr")
    K(f"s_cmp_eq_u32 s{S_LAYER}, 0")
    K(f"s_cbranch_scc0 {lcr}")
    for sl in range(3):
        for j in range(1, 8): K(f"v_add_f32 v{CS+sl}, v{CS+sl}, v{CS+3*j+sl}")
    for sl in range(3): K(f"v_mov_b32 v{CS+4+sl}, v{CS+sl}")
    K("s_nop 1")
    for sl in range(3): K(f"v_permlane32_swap_b32 v{CS+4+sl}, v{CS+sl}")
    K("s_nop 1")
    for sl in range(3): K(f"v_add_f32 v{VCS[sl]}, v{CS+sl}, v{CS+4+sl}")
    K.label(lcr)
    def split(x, hi, lo):
        K(f"v_and_b32 v{hi}, 0xffff0000, v{x}")
        K(f"v_sub_f32 v{lo}, v{x}, v{hi}")
    K("v_cmp_eq_u32 vcc, 1, v3")
    K(f"s_lshl_b32 s{T0}, s{S_W}, 8")
    K(f"s_add_u32 s{T0}, s{T0}, {RSTAT}")
    K(f"v_cndmask_b32 v32, v{VR[0]}, v{VR[1]}, vcc")
    K("v_lshlrev_b32 v33, 2, v1")
    K(f"v_add_u32 v33, s{T0}, v33")
    K("ds_write_b32 v33, v32")
    K("v_lshlrev_b32 v33, 4, v3")
    K(f"v_add_u32 v33, s{T0}, v33")
    RM = 64
    for rt in range(2):
        for q in range(4): K(f"ds_read_b128 {v(RM+16*rt+4*q,4)}, v33 offset:{rt*128+q*32}")
    K("v_cmp_eq_u32 vcc, 0, v3")
    for rt in range(2):
        split(VM[rt], 32, 33)
        o = 40 + 4*rt
        K("v_lshrrev_b32 v34, 16, v32")
        K(f"v_or_b32 v{o}, v34, v32")
        K(f"v_cvt_pk_bf16_f32 v{o+1}, v33, v33")
        K(f"v_and_b32 v{o+1}, 0xffff, v{o+1}")
        K(f"v_cndmask_b32 v{o}, 0, v{o}, vcc")
        K(f"v_cndmask_b32 v{o+1}, 0, v{o+1}, vcc")
        K(f"v_mov_b32 v{o+2}, 0\nv_mov_b32 v{o+3}, 0")
    for sl in (1, 2, 0):
        K(f"v_sub_f32 v35, 0, v{VCS[sl]}")
        split(35, 32, 33)
        o = 48 + 4*sl
        K(f"v_cvt_pk_bf16_f32 v{o}, v32, v33")
        K(f"v_lshrrev_b32 v{o+1}, 16, v32")
        K(f"v_cndmask_b32 v{o}, 0, v{o}, vcc")
        K(f"v_cndmask_b32 v{o+1}, 0, v{o+1}, vcc")
        K(f"v_mov_b32 v{o+2}, 0\nv_mov_b32 v{o+3}, 0")
    K(f"s_mov_b32 s{T0+6}, 0x3fb8aa3b")
    K(f"s_mov_b32 s{T0+7}, 0x3fb8aa3b")
    for sl in (1, 2, 0):
        for rt in range(2):
            acc = v(ACC + 16*(2*sl+rt), 16); M = v(40+4*rt, 4); C = v(48+4*sl, 4)
            if sl == 0: K(f"v_mfma_f32_32x32x16_bf16 {acc}, {C}, {M}, {acc}")
            else:       K(f"v_mfma_f32_32x32x16_bf16 {acc}, {M}, {C}, {acc}")
    K(f"s_mov_b32 s{T0+8}, 0x358637bd")
    K(f"s_mov_b32 s{T0+9}, 0x358637bd")
    SLOG = f"s[{T0+6}:{T0+7}]"; SEPS = f"s[{T0+8}:{T0+9}]"
    K("s_waitcnt lgkmcnt(0)")
    K("s_nop 4")
    KA_, VA_, QA_ = ACC+32, ACC+64, ACC
    def phi_pairs(base, n, T):
        for i in range(0, n, 8):
            for j in range(0, 8, 2): K(f"v_pk_mul_f32 v[{T+j}:{T+j+1}], v[{base+i+j}:{base+i+j+1}], {SLOG}")
            for j in range(8): K(f"v_exp_f32 v{T+j}, v{T+j} clamp")
            for j in range(8): K(f"v_max_f32 v{base+i+j}, 0, v{base+i+j}")
            for j in range(0, 8, 2): K(f"v_pk_add_f32 v[{T+j}:{T+j+1}], v[{T+j}:{T+j+1}], {SEPS}")
            for j in range(0, 8, 2): K(f"v_pk_add_f32 v[{base+i+j}:{base+i+j+1}], v[{base+i+j}:{base+i+j+1}], v[{T+j}:{T+j+1}]")
    for i in range(0, 32, 2): K(f"v_pk_mul_f32 v[{KA_+i}:{KA_+i+1}], v[{KA_+i}:{KA_+i+1}], v[{RM+i}:{RM+i+1}]")
    phi_pairs(KA_, 32, 32)
    for i in range(0, 32, 2): K(f"v_pk_mul_f32 v[{VA_+i}:{VA_+i+1}], v[{VA_+i}:{VA_+i+1}], v[{RM+i}:{RM+i+1}]")
    PK = 96; PV = 112
    for i in range(16):
        K(f"v_cvt_pk_bf16_f32 v{PK+i}, v{KA_+2*i}, v{KA_+2*i+1}")
        K(f"v_cvt_pk_bf16_f32 v{PV+i}, v{VA_+2*i}, v{VA_+2*i+1}")
    KVD = 64
    first = True
    for rt in range(2):
        for ks in range(2):
            c = "0" if first else v(KVD, 16)
            K(f"v_mfma_f32_32x32x16_bf16 {v(KVD,16)}, {v(PK+8*rt+4*ks,4)}, {v(PV+8*rt+4*ks,4)}, {c}")
            first = False
    K(f"v_pk_add_f32 v[28+14:29+14], v[{KA_}:{KA_+1}], v[{KA_+2}:{KA_+3}]".replace("28+14", "42").replace("29+14", "43"))
    for i in range(4, 32, 2): K(f"v_pk_add_f32 v[42:43], v[42:43], v[{KA_+i}:{KA_+i+1}]")
    K("v_add_f32 v42, v42, v43")
    K("v_mov_b32 v43, v42")
    K(f"s_mul_i32 s{T0}, s{S_CH}, 4352")
    K(f"s_add_u32 s{T0}, s{T0}, {X3B}")
    K("v_permlane32_swap_b32 v43, v42")
    K("v_lshlrev_b32 v6, 4, v1")
    K(f"v_add_u32 v8, s{T0}, v6")
    K("v_add_f32 v42, v42, v43")
    K("v_lshlrev_b32 v9, 2, v1")
    K(f"v_add_u32 v9, s{T0}, v9")
    K(f"s_cmp_eq_u32 s{S_RH}, 0")
    K("s_cbranch_scc1 L_kvw0")
    K("s_nop 1")
    for qd in range(4): K(f"ds_write_b128 v8, {v(KVD+4*qd,4)} offset:{qd*1024}")
    K("ds_write_b32 v9, v42 offset:4096")
    K("s_waitcnt lgkmcnt(0)")
    BAR("X3")
    K("s_branch L_kvw1")
    K.label("L_kvw0")
    K(f"s_lshl_b32 s{T0}, s{S_CT}, 1")
    K(f"s_add_u32 s{T0}, s{T0}, s{S_CH}")
    K(f"s_lshl_b32 s{T0}, s{T0}, 4")
    K(f"s_add_u32 s{T0}, s{T0}, s{S_RB}")
    K(f"s_mul_i32 s{T0}, s{T0}, {KVP_STRIDE}")
    K(f"s_add_u32 s{T0}, s{T0}, s{S_KVPOFF}")
    K("v_lshlrev_b32 v7, 2, v1")
    K("v_add_u32 v7, 2048, v7")
    K("s_barrier")
    for qd in range(4): K(f"ds_read_b128 {v(44+4*qd,4)}, v8 offset:{qd*1024}")
    K("ds_read_b32 v60, v9 offset:4096")
    K("s_waitcnt lgkmcnt(0)")
    for i in range(0, 16, 2): K(f"v_pk_add_f32 v[{KVD+i}:{KVD+i+1}], v[{KVD+i}:{KVD+i+1}], v[{44+i}:{45+i}]")
    K("v_add_f32 v42, v42, v60")
    for i in range(8): K(f"v_cvt_pk_bf16_f32 v{32+i}, v{KVD+2*i}, v{KVD+2*i+1}")
    for h in range(2): K(f"buffer_store_dwordx4 {v(32+4*h,4)}, v6, {WS}, s{T0} offen offset:{h*1024} sc1")
    K("v_cmp_gt_u32 vcc, 32, v1")
    K("s_and_saveexec_b64 s[90:91], vcc")
    K(f"buffer_store_dword v42, v7, {WS}, s{T0} offen sc1")
    K("s_mov_b64 exec, s[90:91]")
    K("s_waitcnt vmcnt(0)")
    K.label("L_kvw1")
    ST(10)
    BAR("A3")
    for rt in range(2):
        for i in range(0, 16, 2):
            K(f"v_pk_mul_f32 v[{QA_+16*rt+i}:{QA_+16*rt+i+1}], v[{QA_+16*rt+i}:{QA_+16*rt+i+1}], v[{VR[rt]}:{VR[rt]+1}] op_sel_hi:[1,0]")
    phi_pairs(QA_, 32, 32)
    PQ = 96
    for i in range(16): K(f"v_cvt_pk_bf16_f32 v{PQ+i}, v{QA_+2*i}, v{QA_+2*i+1}")
    set_addr(0, 16384)
    ST(11)
    BAR("B3")
    ST(12)
    m_load_sum()
    BAR("C3")
    K(f"s_mul_i32 s{T0}, s{S_CH}, 24576")
    K(f"s_add_u32 s{T0}, s{T0}, 24576")
    K(f"v_add_u32 v13, s{T0}, v6")
    K("v_lshlrev_b32 v14, 4, v3")
    K(f"v_add_u32 v14, s{T0}, v14")
    slots = [0, 8192, 49152, 49152+8192]
    for si, so in enumerate(slots):
        for qd in range(4): K(f"ds_read_b128 {v(128+16*si+4*qd,4)}, v13 offset:{so+qd*1024}")
        if si & 1: K("s_waitcnt lgkmcnt(0)")
    for si, so in enumerate(slots):
        for qd in range(4): K(f"ds_read_b128 {v(32+16*si+4*qd,4)}, v14 offset:{so+4096+32*qd}")
        if si == 1: K("s_waitcnt lgkmcnt(0)")
    for i in range(0, 16, 2):
        K(f"v_pk_add_f32 v[{128+i}:{129+i}], v[{128+i}:{129+i}], v[{144+i}:{145+i}]")
        K(f"v_pk_add_f32 v[{160+i}:{161+i}], v[{160+i}:{161+i}], v[{176+i}:{177+i}]")
    for i in range(0, 16, 2):
        K(f"v_pk_add_f32 v[{128+i}:{129+i}], v[{128+i}:{129+i}], v[{160+i}:{161+i}]")
    for i in range(8): K(f"v_cvt_pk_bf16_f32 v{176+i}, v{128+2*i}, v{128+2*i+1}")
    K("s_waitcnt lgkmcnt(0)")
    for rt in range(2):
        acc = v(144+16*rt, 16)
        K(f"v_mfma_f32_32x32x16_bf16 {acc}, v[176:179], {v(PQ+8*rt,4)}, 0")
        K(f"v_mfma_f32_32x32x16_bf16 {acc}, v[180:183], {v(PQ+8*rt+4,4)}, {acc}")
    for i in range(0, 16, 2):
        K(f"v_pk_add_f32 v[{32+i}:{33+i}], v[{32+i}:{33+i}], v[{48+i}:{49+i}]")
        K(f"v_pk_add_f32 v[{64+i}:{65+i}], v[{64+i}:{65+i}], v[{80+i}:{81+i}]")
    for i in range(0, 16, 2):
        K(f"v_pk_add_f32 v[{32+i}:{33+i}], v[{32+i}:{33+i}], v[{64+i}:{65+i}]")
    for i in range(8):
        for rt in range(2):
            D = 48 + 2*rt
            t = 56 + 2*rt + 4*(i & 1)
            K(f"v_lshlrev_b32 v{t}, 16, v{PQ+8*rt+i}")
            K(f"v_and_b32 v{t+1}, 0xffff0000, v{PQ+8*rt+i}")
            if i == 0: K(f"v_pk_mul_f32 v[{D}:{D+1}], v[{t}:{t+1}], v[{32+2*i}:{33+2*i}]")
            else:      K(f"v_pk_fma_f32 v[{D}:{D+1}], v[{t}:{t+1}], v[{32+2*i}:{33+2*i}], v[{D}:{D+1}]")
    for rt in range(2): K(f"v_add_f32 v{48+2*rt}, v{48+2*rt}, v{49+2*rt}")
    for rt in range(2): K(f"v_mov_b32 v{49+2*rt}, v{48+2*rt}")
    K("s_nop 1")
    for rt in range(2): K(f"v_permlane32_swap_b32 v{49+2*rt}, v{48+2*rt}")
    K("s_nop 1")
    for rt in range(2):
        K(f"v_add_f32 v{48+2*rt}, v{48+2*rt}, v{49+2*rt}")
        K(f"v_add_f32 v{48+2*rt}, s{T0+8}, v{48+2*rt}")
        K(f"v_rcp_f32 v{48+2*rt}, v{48+2*rt}")
    K("s_nop 0")
    for rt in range(2):
        acc = 144 + 16*rt
        for i in range(0, 16, 2):
            K(f"v_pk_mul_f32 v[{acc+i}:{acc+i+1}], v[{acc+i}:{acc+i+1}], v[{48+2*rt}:{49+2*rt}] op_sel_hi:[1,0]")
        for qq in range(2):
            o = 64 + 8*rt + 4*qq
            for j in range(4): K(f"v_cvt_pk_bf16_f32 v{o+j}, v{acc+8*qq+2*j}, v{acc+8*qq+2*j+1}")
    K("s_nop 1")
    for rt in range(2):
        for qq in range(2):
            o = 64 + 8*rt + 4*qq
            K(f"v_permlane32_swap_b32 v{o}, v{o+2}")
            K(f"v_permlane32_swap_b32 v{o+1}, v{o+3}")
    tile_write(O_TB, 64)
    GACC = 128; GF = [32, 80]
    K(f"s_mov_b32 s{T0+2}, {G2STG}")
    K(f"s_mov_b32 s{T0+4}, 0")
    K(f"s_mov_b32 s{T0+3}, 0")
    K("s_waitcnt lgkmcnt(0)")
    ST(13)
    BAR("S4")
    ST(14); STC(54)
    def reads2(st):
        r = []
        for ks in range(4):
            for rt in range(2): r.append(f"ds_read_b128 {v(st+12*ks+4*rt,4)}, v{AA[ks]} offset:{rt*4096}")
            for t in range(2):  r.append(f"ds_read_b64_tr_b16 {v(st+12*ks+8+2*t,2)}, v{BA} offset:{ks*2048+t*512}")
        return r
    def mfmas2(st, zero=False):
        m = []
        for ks in range(4):
            for rt in range(2):
                acc = v(GACC+16*rt, 16)
                c = "0" if (zero and ks == 0) else acc
                m.append(f"v_mfma_f32_32x32x16_bf16 {acc}, {v(st+12*ks+8,4)}, {v(st+12*ks+4*rt,4)}, {c}")
        return m
    def adv2():
        K(f"s_add_u32 s{T0+4}, s{T0+4}, 1")
        K(f"s_cmp_eq_u32 s{T0+4}, {G2N}")
        K(f"s_cselect_b32 s{T0+5}, {(-(G2N-1)*G2STG) & 0xffffffff:#x}, s{T0+2}")
        K(f"s_cselect_b32 s{T0+4}, 0, s{T0+4}")
        for r in AA + [BA]: K(f"v_add_u32 v{r}, s{T0+5}, v{r}")
    for x in reads2(GF[0]): K(x)
    adv2()
    K("s_waitcnt lgkmcnt(0)")
    for m in mfmas2(GF[0], zero=True): K(m)
    K("s_barrier")
    for x in reads2(GF[1]): K(x)
    adv2()
    K(f"s_mov_b32 s{T0+3}, 1")
    ALIGN()
    K.label("L_g2loop")
    for half in (1, 0):
        c_ = GF[half]; n_ = GF[half ^ 1]
        K("s_waitcnt lgkmcnt(0)")
        if half == 1:
            K(f"s_cmp_eq_u32 s{T0+3}, 15")
            K("s_cbranch_scc1 L_g2last")
        K("s_barrier")
        ms = mfmas2(c_); rs = reads2(n_)
        for i, m in enumerate(ms):
            K(m)
            for x in rs[2*i:2*i+2]: K(x)
        adv2()
        if half == 0:
            K(f"s_add_u32 s{T0+3}, s{T0+3}, 2")
            K("s_branch L_g2loop")
    K.label("L_g2last")
    for m in mfmas2(GF[1]): K(m)
    bars["C"].append("G2.loop15")
    ST(15); STC(55)
    BAR("D5")
    K("s_nop 7")
    for rt in range(2):
        acc = GACC + 16*rt
        for qq in range(2):
            a = acc + 8*qq
            for j in range(4): K(f"v_permlane32_swap_b32 v{a+j}, v{a+4+j}")
    n = 0
    for qq in range(2):
        for j in range(4):
            for rt in range(2):
                acc = GACC + 16*rt
                a = acc + 8*qq; r = XT + 8*rt + 4*qq
                t = 56 + 2*(n % 4); n += 1
                K(f"v_lshlrev_b32 v{t}, 16, v{r+j}")
                K(f"v_and_b32 v{t+1}, 0xffff0000, v{r+j}")
                K(f"v_pk_add_f32 v[{a+2*j}:{a+2*j+1}], v[{a+2*j}:{a+2*j+1}], v[{t}:{t+1}]")
                acc_stats(qq == 0 and j == 0, rt, a+2*j)
                K(f"v_cvt_pk_bf16_f32 v{r+j}, v{a+2*j}, v{a+2*j+1}")
    K(f"s_cmp_eq_u32 s{S_LAYER}, 1")
    K("s_cbranch_scc1 L_final")
    stats_to_lds(S2, Q2, X2_SX)
    K("s_waitcnt lgkmcnt(0)")
    ST(16)
    BAR("S5")
    K(f"s_mov_b32 s{T0+5}, 0")
    K.label("L_x2poll")
    stats_load(f"{WS_STX2:#x}", 64)
    K(f"s_add_u32 s{T0+5}, s{T0+5}, 1")
    K("s_waitcnt vmcnt(0)")
    K("v_max3_u32 v40, v64, v66, v68")
    K("v_max3_u32 v41, v70, v72, v74")
    K("v_max3_u32 v40, v40, v76, v78")
    K("v_max3_u32 v41, v41, v80, v82")
    K("v_max3_u32 v40, v40, v84, v86")
    K("v_max3_u32 v41, v41, v88, v90")
    K("v_max3_u32 v40, v40, v92, v94")
    K("v_max_u32 v40, v40, v41")
    K(f"s_cmp_gt_u32 s{T0+5}, 0x20000")
    K("s_cbranch_scc1 L_x2go")
    K("v_cmp_eq_u32 vcc, -1, v40")
    K("s_cbranch_vccnz L_x2poll")
    K.label("L_x2go")
    ST(17)
    K(f"s_mov_b32 s{S_LAYER}, 1")
    K(f"s_mov_b32 s{S_STXA}, {WS_STXA[1]:#x}")
    K(f"s_mov_b32 s{S_KVPOFF}, {WS_KVP[1]:#x}")
    stats_reduce(64)
    K("s_branch L_etail")
    K.label("L_final")
    tile_write(OUT_TB, XT)
    K("s_waitcnt lgkmcnt(0)")
    K("s_barrier")
    ST(18)
    if stamp:
        ST(19); STC(61)
        K(f"s_lshl_b32 s{T0}, s2, 3")
        K(f"s_add_u32 s{T0}, s{T0}, s{S_W}")
        K(f"s_lshl_b32 s{T0}, s{T0}, 8")
        K(f"s_add_u32 s{T0}, s{T0}, {200*MB:#x}")
        K("v_lshlrev_b32 v5, 2, v1")
        K(f"buffer_store_dword v{STV}, v5, {WS}, s{T0} offen")
    K("s_endpgm")

    cur[0] = "H"
    K.label("L_helper")
    SLW = T0+10
    K(f"s_sub_u32 s{SLW}, s{S_W}, 4")
    def poll(conds):
        l = K.newlabel("pw"); le = K.newlabel("pwe")
        for i, (off, sr, tg) in enumerate(conds): K(f"v_mov_b32 v{5+i}, {off}")
        K(f"s_mov_b32 s{T0+1}, 0")
        K.label(l)
        for i, (off, sr, tg) in enumerate(conds): K(f"buffer_load_dword v{8+i}, v{5+i}, {sr}, 0 offen sc1")
        K(f"s_add_u32 s{T0+1}, s{T0+1}, 1")
        K(f"s_cmp_gt_u32 s{T0+1}, 0x40000")
        K(f"s_cbranch_scc1 {le}")
        K("s_waitcnt vmcnt(0)")
        for i, (off, sr, tg) in enumerate(conds):
            K(f"v_xor_b32 v{8+i}, {tg}, v{8+i}")
            if i: K(f"v_or_b32 v8, v8, v{8+i}")
        K("v_cmp_ne_u32 vcc, 0, v8")
        K(f"s_cbranch_vccnz {l}")
        K.label(le)
    def cnt_addr(kind, ph, dst):
        base = S_ROWCNT if kind == "row" else S_COLCNT
        if isinstance(ph, int): K(f"s_add_u32 s{dst}, s{base}, {ph*CNT_PH}")
        else:                   K(f"s_add_u32 s{dst}, s{base}, {ph}")
    def master(arr, waits, go=False):
        lab = K.newlabel("nm")
        K(f"s_cmp_eq_u32 s{S_W}, 4")
        K(f"s_cbranch_scc0 {lab}")
        K("v_cmp_eq_u32 vcc, 0, v1")
        K("s_and_saveexec_b64 s[90:91], vcc")
        if go:
            K(f"s_lshl_b32 s{T0+2}, s{S_RB}, 2")
            K(f"s_lshl_b32 s{T0+3}, s{S_CT}, 2")
            K(f"s_add_u32 s{T0+3}, s{T0+3}, 64")
            poll([(f"s{T0+2}", srd(S_DBG), 1), (f"s{T0+3}", srd(S_DBG), 1)])
        K("v_mov_b32 v10, 1")
        for i, (kind, ph) in enumerate(arr):
            cnt_addr(kind, ph, T0+2)
            K(f"v_mov_b32 v{11+i}, s{T0+2}")
            K(f"buffer_atomic_add v10, v{11+i}, {WS}, 0 offen sc1")
        cs = []
        for i, (kind, ph) in enumerate(waits):
            cnt_addr(kind, ph, T0+2+i)
            cs.append((f"s{T0+2+i}", WS, 16))
        if cs: poll(cs)
        K("s_mov_b64 exec, s[90:91]")
        K.label(lab)
    def lds_sync(SY, kind, ph):
        K(f"v_mov_b32 v5, {SY}")
        K("v_mov_b32 v6, 1")
        K("v_cmp_eq_u32 vcc, 0, v1")
        K("s_and_saveexec_b64 s[90:91], vcc")
        K("ds_add_u32 v5, v6")
        lm = K.newlabel("lm"); le = K.newlabel("ls")
        K(f"s_cmp_eq_u32 s{S_W}, 4")
        K(f"s_cbranch_scc0 {lm}")
        l1 = K.newlabel("l1"); l1e = K.newlabel("l1e")
        K(f"s_mov_b32 s{T0+1}, 0")
        K.label(l1)
        K("ds_read_b32 v7, v5")
        K(f"s_add_u32 s{T0+1}, s{T0+1}, 1")
        K(f"s_cmp_gt_u32 s{T0+1}, 0x100000")
        K(f"s_cbranch_scc1 {l1e}")
        K("s_waitcnt lgkmcnt(0)")
        K("v_cmp_ne_u32 vcc, 4, v7")
        K(f"s_cbranch_vccnz {l1}")
        K.label(l1e)
        cnt_addr(kind, ph, T0+2)
        K(f"v_mov_b32 v11, s{T0+2}")
        K(f"buffer_atomic_add v6, v11, {WS}, 0 offen sc1")
        poll([(f"s{T0+2}", WS, 16)])
        K(f"v_mov_b32 v5, {SY}")
        K("v_mov_b32 v6, 1")
        K("ds_write_b32 v5, v6 offset:4")
        K(f"s_branch {le}")
        K.label(lm)
        l2 = K.newlabel("l2")
        K(f"s_mov_b32 s{T0+1}, 0")
        K.label(l2)
        K("ds_read_b32 v7, v5 offset:4")
        K(f"s_add_u32 s{T0+1}, s{T0+1}, 1")
        K(f"s_cmp_gt_u32 s{T0+1}, 0x400000")
        K(f"s_cbranch_scc1 {le}")
        K("s_waitcnt lgkmcnt(0)")
        K("v_cmp_ne_u32 vcc, 1, v7")
        K(f"s_cbranch_vccnz {l2}")
        K.label(le)
        K("s_waitcnt lgkmcnt(0)")
        K("s_mov_b64 exec, s[90:91]")
    def zero_sync(SY):
        l = K.newlabel("zs")
        K(f"s_cmp_eq_u32 s{S_W}, 5")
        K(f"s_cbranch_scc0 {l}")
        K(f"v_mov_b32 v5, {SY}")
        K("v_mov_b32 v8, 0\nv_mov_b32 v9, 0\nv_mov_b32 v10, 0\nv_mov_b32 v11, 0")
        K("ds_write_b128 v5, v[8:11]")
        K("s_waitcnt lgkmcnt(0)")
        K.label(l)
    lp = K.newlabel("po")
    K(f"s_cmp_eq_u32 s{S_W}, 5")
    K(f"s_cbranch_scc0 {lp}")
    K(f"s_lshl_b32 s{T0}, s{S_RB}, 4")
    K(f"s_add_u32 s{T0}, s{T0}, s{S_CT}")
    K(f"s_lshl_b32 s{T0}, s{T0}, 10")
    K(f"s_add_u32 s{T0}, s{T0}, {WS_STX2:#x}")
    K("v_lshlrev_b32 v5, 4, v1")
    for i in range(4): K(f"v_mov_b32 v{8+i}, -1")
    K(f"buffer_store_dwordx4 v[8:11], v5, {WS}, s{T0} offen sc1")
    K.label(lp)
    master([], [], go=True)
    K("s_waitcnt vmcnt(0)")
    STH(2)
    BAR("A0")
    STH(3)
    master([("col", C_KVT)], [("col", C_KVT)])
    STH(7)
    VA = 16; VO = 20; VB = 216; VLIN = 24
    K("v_lshrrev_b32 v5, 3, v1")
    K("v_and_b32 v6, 7, v1")
    K("v_lshrrev_b32 v7, 4, v1")
    K(f"s_lshl_b32 s{T0}, s{S_RB}, 18")
    K(f"s_lshl_b32 s{T0+1}, s{SLW}, 16")
    K(f"s_add_u32 s{T0}, s{T0}, s{T0+1}")
    for i in range(4):
        K(f"v_xor_b32 v8, {4*(i&1)}, v7")
        K("v_xor_b32 v8, v8, v6")
        K("v_lshlrev_b32 v8, 4, v8")
        K(f"v_add_u32 v9, {8*i}, v5")
        K("v_lshl_add_u32 v8, v9, 11, v8")
        K(f"v_add_u32 v{VA+i}, s{T0}, v8")
    K(f"s_lshl_b32 s{T0}, s{SLW}, 12")
    K(f"v_lshlrev_b32 v{VLIN}, 4, v1")
    K(f"v_add_u32 v{VLIN}, s{T0}, v{VLIN}")
    K("v_bfe_u32 v8, v1, 4, 1")
    K("v_lshlrev_b32 v8, 2, v8")
    K("v_xor_b32 v8, v8, v6")
    K("v_lshlrev_b32 v8, 4, v8")
    K(f"s_movk_i32 s{T0}, 6144")
    K(f"v_mul_lo_u32 v9, v5, s{T0}")
    K("v_add_u32 v9, v9, v8")
    K(f"s_lshl_b32 s{T0+1}, s{S_CT}, 7")
    for i in range(6):
        K(f"s_mul_i32 s{T0+2}, s{SLW}, 6")
        K(f"s_add_u32 s{T0+2}, s{T0+2}, {i}")
        K(f"s_lshr_b32 s{T0+3}, s{T0+2}, 3")
        K(f"s_and_b32 s{T0+4}, s{T0+2}, 7")
        K(f"s_lshl_b32 s{T0+3}, s{T0+3}, 11")
        K(f"s_mul_i32 s{T0+4}, s{T0+4}, {8*6144}")
        K(f"s_add_u32 s{T0+3}, s{T0+3}, s{T0+4}")
        K(f"s_add_u32 s{T0+3}, s{T0+3}, s{T0+1}")
        K(f"v_add_u32 v{VB+i}, s{T0+3}, v9")
    K("v_lshl_add_u32 v9, v5, 11, v8")
    for i in range(2):
        K(f"s_lshl_b32 s{T0+2}, s{SLW}, 1")
        K(f"s_add_u32 s{T0+2}, s{T0+2}, {i}")
        K(f"s_lshl_b32 s{T0+2}, s{T0+2}, 14")
        K(f"s_add_u32 s{T0+2}, s{T0+2}, s{T0+1}")
        K(f"v_add_u32 v{VO+i}, s{T0+2}, v9")
    SLA, SLB1, SLB2 = T0+11, T0+12, T0+13
    K(f"s_lshl_b32 s{SLA}, s{SLW}, 12")
    K(f"s_mul_i32 s{SLB1}, s{SLW}, 6144")
    K(f"s_add_u32 s{SLB1}, s{SLB1}, 16384")
    K(f"s_lshl_b32 s{SLB2}, s{SLW}, 11")
    K(f"s_add_u32 s{SLB2}, s{SLB2}, 16384")
    SIA, SIB, SKA, SKB, SABASE = T0+14, T0+15, T0+16, T0+17, T0+18
    SCT7 = T0+19
    K(f"s_lshl_b32 s{SCT7}, s{S_CT}, 7")
    def issueA(buf):
        K(f"s_lshl_b32 s{SKA}, s{SIA}, 7")
        K(f"s_add_u32 s{SKA}, s{SKA}, s{SABASE}")
        K(f"s_add_u32 m0, s{SLA}, {buf}")
        for i in range(4):
            K("s_nop 0")
            K(f"buffer_load_dwordx4 v{VA+i}, {WS}, s{SKA} offen sc1 lds")
            if i < 3: K("s_add_u32 m0, m0, 1024")
        K(f"s_add_u32 s{SIA}, s{SIA}, 1")
        K(f"s_and_b32 s{SIA}, s{SIA}, 15")
    def issueW(buf):
        K(f"s_mul_i32 s{SKB}, s{SIB}, {64*6144}")
        K(f"s_add_u32 m0, s{SLB1}, {buf}")
        for i in range(6):
            K("s_nop 0")
            K(f"buffer_load_dwordx4 v{VB+i}, {srd(S_WQKV)}, s{SKB} offen lds")
            if i < 5: K("s_add_u32 m0, m0, 1024")
        K(f"s_add_u32 s{SIB}, s{SIB}, 1")
        K(f"s_and_b32 s{SIB}, s{SIB}, 15")
    def issueO(buf):
        K(f"s_lshl_b32 s{SKB}, s{SIB}, 17")
        K(f"s_add_u32 m0, s{SLB2}, {buf}")
        for i in range(2):
            K("s_nop 0")
            K(f"buffer_load_dwordx4 v{VO+i}, {srd(S_WO)}, s{SKB} offen lds")
            if i < 1: K("s_add_u32 m0, m0, 1024")
        K(f"s_add_u32 s{SIB}, s{SIB}, 1")
        K(f"s_and_b32 s{SIB}, s{SIB}, 15")
    def tile_store4(TB, sr, soff, sc="sc1"):
        K(f"v_add_u32 v5, {TB}, v{VLIN}")
        for i in range(4): K(f"ds_read_b128 {v(32+4*i,4)}, v5 offset:{1024*i}")
        for i in range(4):
            K(f"s_waitcnt lgkmcnt({3-i})")
            K(f"buffer_store_dwordx4 {v(32+4*i,4)}, v{VA+i}, {sr}, {soff} offen {sc}")
    def stats_store(SX, stoff):
        l = K.newlabel("ss")
        K(f"s_cmp_ge_u32 s{SLW}, 2")
        K(f"s_cbranch_scc1 {l}")
        K(f"s_lshl_b32 s{T0}, s{SLW}, 9")
        K("v_lshlrev_b32 v7, 3, v1")
        K(f"v_add_u32 v6, s{T0}, v7")
        K(f"v_add_u32 v6, {SX}, v6")
        K("ds_read_b64 v[48:49], v6")
        K("ds_read_b64 v[50:51], v6 offset:1024")
        K(f"s_lshl_b32 s{T0+1}, s{S_RB}, 4")
        K(f"s_add_u32 s{T0+1}, s{T0+1}, s{S_CT}")
        K(f"s_lshl_b32 s{T0+1}, s{T0+1}, 10")
        K(f"s_add_u32 s{T0}, s{T0}, s{T0+1}")
        K(f"s_add_u32 s{T0}, s{T0}, {stoff}")
        K("s_waitcnt lgkmcnt(0)")
        K("v_pk_add_f32 v[48:49], v[48:49], v[50:51]")
        K(f"buffer_store_dwordx2 v[48:49], v7, {WS}, s{T0} offen sc1")
        K.label(l)
    g1buf = lambda s_: ((s_ + 2) % G1N) * G1STG
    BAR("B0")
    BAR("B0b")
    STH(8)
    K("v_lshrrev_b32 v176, 1, v1")
    K("v_and_b32 v177, 1, v1")
    K("v_lshlrev_b32 v178, 11, v176")
    K("v_lshl_add_u32 v178, v177, 6, v178")
    K(f"s_lshl_b32 s{T0}, s{S_RB}, 18")
    K(f"s_lshl_b32 s{T0+1}, s{SLW}, 16")
    K(f"s_add_u32 s{T0}, s{T0}, s{T0+1}")
    K(f"s_add_u32 s{T0}, s{T0}, s{SCT7}")
    for i in range(4): K(f"buffer_load_dwordx4 {v(128+4*i,4)}, v178, {srd(S_Q)}, s{T0} offen offset:{16*i}")
    K("v_lshrrev_b32 v179, 3, v1")
    K("v_and_b32 v180, 7, v1")
    K(f"s_movk_i32 s{T0+5}, 6144")
    K("v_lshlrev_b32 v181, 3, v179")
    K(f"v_mul_lo_u32 v181, v181, s{T0+5}")
    K("v_lshl_add_u32 v181, v180, 4, v181")
    K(f"s_mul_i32 s{T0+6}, s{S_RB}, {64*6144}")
    K(f"s_add_u32 s{T0+6}, s{T0+6}, s{SCT7}")
    K(f"s_min_u32 s{T0+7}, s{SLW}, 2")
    K(f"s_lshl_b32 s{T0+7}, s{T0+7}, 11")
    K(f"s_add_u32 s{T0+6}, s{T0+6}, s{T0+7}")
    for i in range(8):
        K(f"buffer_load_dwordx4 {v(144+4*i,4)}, v181, {srd(S_WQKV)}, s{T0+6} offen")
        if i < 7: K(f"s_add_u32 s{T0+6}, s{T0+6}, 6144")
    K(f"s_mov_b32 s{SIB}, s{S_CT}")
    issueW(g1buf(0)); issueW(g1buf(1))
    K("v_lshlrev_b32 v182, 11, v179")
    K("v_lshl_add_u32 v182, v180, 4, v182")
    K(f"s_lshl_b32 s{T0+6}, s{S_RB}, 17")
    K(f"s_lshl_b32 s{T0+7}, s{SLW}, 15")
    K(f"s_add_u32 s{T0+6}, s{T0+6}, s{T0+7}")
    K(f"s_add_u32 s{T0+6}, s{T0+6}, s{SCT7}")
    K(f"buffer_load_dwordx4 v[208:211], v182, {srd(S_WO)}, s{T0+6} offen")
    K(f"s_add_u32 s{T0+6}, s{T0+6}, 16384")
    K(f"buffer_load_dwordx4 v[212:215], v182, {srd(S_WO)}, s{T0+6} offen")
    K("s_waitcnt vmcnt(22)")
    for i in range(16):
        t = 56 + 2*(i & 3)
        K(f"v_lshlrev_b32 v{t}, 16, v{128+i}")
        K(f"v_and_b32 v{t+1}, 0xffff0000, v{128+i}")
        acc_stats(i < 2, i & 1, t)
    K(f"v_pk_add_f32 v[{S2[0]}:{S2[0]+1}], v[{S2[0]}:{S2[0]+1}], v[{S2[1]}:{S2[1]+1}]")
    K(f"v_pk_add_f32 v[{Q2[0]}:{Q2[0]+1}], v[{Q2[0]}:{Q2[0]+1}], v[{Q2[1]}:{Q2[1]+1}]")
    K(f"v_add_f32 v44, v{S2[0]}, v{S2[0]+1}")
    K(f"v_add_f32 v45, v{Q2[0]}, v{Q2[0]+1}")
    K(f"s_lshl_b32 s{T0}, s{S_RB}, 4")
    K(f"s_add_u32 s{T0}, s{T0}, s{S_CT}")
    K("v_add_f32_dpp v44, v44, v44 quad_perm:[1,0,3,2] row_mask:0xf bank_mask:0xf")
    K("v_add_f32_dpp v45, v45, v45 quad_perm:[1,0,3,2] row_mask:0xf bank_mask:0xf")
    K(f"s_lshl_b32 s{T0}, s{T0}, 10")
    K(f"s_lshl_b32 s{T0+1}, s{SLW}, 8")
    K(f"s_add_u32 s{T0}, s{T0}, s{T0+1}")
    K(f"s_add_u32 s{T0}, s{T0}, {WS_STQ:#x}")
    K("v_lshlrev_b32 v46, 3, v176")
    K("v_cmp_eq_u32 vcc, 0, v177")
    K("s_and_saveexec_b64 s[90:91], vcc")
    K(f"buffer_store_dwordx2 v[44:45], v46, {WS}, s{T0} offen sc1")
    K("s_mov_b64 exec, s[90:91]")
    K(f"s_cmp_eq_u32 s{SLW}, 3")
    K("s_cbranch_scc1 L_nocs")
    K("s_waitcnt vmcnt(15)")
    for dw in range(4):
        for i in range(8):
            src_ = 144 + 4*i + dw
            t = 190 + 2*dw if i == 0 else 184 + 2*(i % 3)
            K(f"v_lshlrev_b32 v{t}, 16, v{src_}")
            K(f"v_and_b32 v{t+1}, 0xffff0000, v{src_}")
            if i: K(f"v_pk_add_f32 v[{190+2*dw}:{191+2*dw}], v[{190+2*dw}:{191+2*dw}], v[{t}:{t+1}]")
    K("s_nop 1")
    for c in range(8): K(f"v_add_f32_dpp v{190+c}, v{190+c}, v{190+c} row_ror:8 row_mask:0xf bank_mask:0xf")
    for c in range(8): K(f"v_mov_b32 v{200+c}, v{190+c}")
    K("s_nop 1")
    for c in range(8): K(f"v_permlane16_swap_b32 v{200+c}, v{190+c}")
    K("s_nop 1")
    for c in range(8): K(f"v_add_f32 v{190+c}, v{190+c}, v{200+c}")
    for c in range(8): K(f"v_mov_b32 v{200+c}, v{190+c}")
    K("s_nop 1")
    for c in range(8): K(f"v_permlane32_swap_b32 v{200+c}, v{190+c}")
    K("s_nop 1")
    for c in range(8): K(f"v_add_f32 v{190+c}, v{190+c}, v{200+c}")
    K(f"s_lshl_b32 s{T0+6}, s{S_CT}, 4")
    K(f"s_add_u32 s{T0+6}, s{T0+6}, s{S_RB}")
    K(f"s_mul_i32 s{T0+6}, s{T0+6}, 768")
    K(f"s_lshl_b32 s{T0+5}, s{SLW}, 8")
    K(f"s_add_u32 s{T0+6}, s{T0+6}, s{T0+5}")
    K(f"s_add_u32 s{T0+6}, s{T0+6}, {WS_CSP:#x}")
    K("v_lshlrev_b32 v10, 5, v1")
    K("v_cmp_gt_u32 vcc, 8, v1")
    K("s_and_saveexec_b64 s[90:91], vcc")
    K(f"buffer_store_dwordx4 v[190:193], v10, {WS}, s{T0+6} offen sc1")
    K(f"buffer_store_dwordx4 v[194:197], v10, {WS}, s{T0+6} offen offset:16 sc1")
    K("s_mov_b64 exec, s[90:91]")
    K.label("L_nocs")
    STH(4)
    K("s_waitcnt vmcnt(0)")
    BAR("A1")
    STH(9)
    master([("col", C_Y), ("row", R_QST)], [("col", C_Y), ("row", R_QST)])
    STH(10)
    BAR("B1")
    K("v_lshrrev_b32 v5, 4, v1")
    K("v_lshlrev_b32 v5, 12, v5")
    K("v_and_b32 v6, 15, v1")
    K("v_lshl_add_u32 v5, v6, 4, v5")
    K(f"s_lshl_b32 s{T0}, s{S_CT}, 18")
    K(f"s_lshl_b32 s{T0+1}, s{S_RB}, 8")
    K(f"s_add_u32 s{T0}, s{T0}, s{T0+1}")
    K(f"s_lshl_b32 s{T0+1}, s{SLW}, 16")
    K(f"s_add_u32 s{T0}, s{T0}, s{T0+1}")
    K(f"s_add_u32 s{T0}, s{T0}, {WS_YT:#x}")
    K(f"s_lshl_b32 m0, s{SLW}, 12")
    for i in range(4):
        K("s_nop 0")
        K(f"buffer_load_dwordx4 v5, {WS}, s{T0} offen sc1 lds")
        K(f"s_add_u32 s{T0}, s{T0}, 16384")
        if i < 3: K("s_add_u32 m0, m0, 1024")
    issueW(g1buf(2))
    zero_sync(XA_SY)
    K("s_waitcnt vmcnt(6)")
    BAR("C1")
    K.label("L_hlayer")
    BAR("S2")
    SPH = T0+20
    STH(13)
    K(f"s_add_u32 s{SPH}, s{S_XAOFF}, s{SCT7}")
    tile_store4(XA_TB, WS, f"s{SPH}")
    stats_store(XA_SX, f"s{S_STXA}")
    STH(14)
    K(f"s_mul_i32 s{SPH}, s{S_LAYER}, {3*CNT_PH}")
    K(f"s_add_u32 s{SPH+1}, s{SPH}, {R_XA0*CNT_PH}")
    K(f"s_mov_b32 s{SABASE}, s{S_XAOFF}")
    K(f"s_add_u32 s{SIA}, s{S_CT}, 1")
    K(f"s_and_b32 s{SIA}, s{SIA}, 15")
    K("s_waitcnt vmcnt(0)")
    STH(15)
    lds_sync(XA_SY, "row", f"s{SPH+1}")
    STH(16)
    issueA(g1buf(1)); issueA(g1buf(2))
    STH(17)
    K("s_waitcnt vmcnt(4)")
    STH(18)
    K("s_barrier")
    STH(19)
    for i in range(1, 15):
        if i + 2 <= 15:
            issueA(g1buf(i+2)); issueW(g1buf(i+2))
        n = 10 if i <= 13 else 0
        K(f"s_waitcnt vmcnt({n})")
        K("s_barrier")
        if i in (1, 2, 3, 8): STH(19 + min(i, 4))
    bars["H"].append("G1.loop15")
    BAR("X3")
    BAR("A3")
    K(f"s_add_u32 s{SPH+1}, s{S_LAYER}, {C_KVP0}")
    K(f"s_mul_i32 s{SPH+1}, s{SPH+1}, {CNT_PH}")
    master([("col", f"s{SPH+1}")], [("col", f"s{SPH+1}")])
    BAR("B3")
    m_load_sum()
    K(f"s_mov_b32 s{SIB}, s{S_CT}")
    for j in range(G2N-1): issueO(j*G2STG)
    zero_sync(O_SY)
    BAR("C3")
    K("s_waitcnt vmcnt(0)")
    BAR("S4")
    STH(32)
    K(f"s_add_u32 s{SPH+1}, s{S_OOFF}, s{SCT7}")
    tile_store4(O_TB, WS, f"s{SPH+1}")
    K(f"s_add_u32 s{SPH+1}, s{SPH}, {R_O0*CNT_PH}")
    K(f"s_mov_b32 s{SABASE}, s{S_OOFF}")
    K(f"s_add_u32 s{SIA}, s{S_CT}, 1")
    K(f"s_and_b32 s{SIA}, s{SIA}, 15")
    STH(33)
    K("s_waitcnt vmcnt(0)")
    STH(34)
    lds_sync(O_SY, "row", f"s{SPH+1}")
    STH(35)
    issueA(1*G2STG); issueA(2*G2STG)
    K("s_waitcnt vmcnt(4)")
    STH(36)
    K("s_barrier")
    STH(37)
    waits = {1: 8, 2: 10, 13: 6, 14: 0}
    for i in range(1, 15):
        if i == 1:
            issueA(3*G2STG); issueA(4*G2STG)
        elif i + 3 <= 15:
            b = ((i+3) % G2N) * G2STG
            issueA(b); issueO(b)
        K(f"s_waitcnt vmcnt({waits.get(i, 12)})")
        if i in (1, 2, 3, 4, 8, 12): STH(38 + 2*(1,2,3,4,8,12).index(i))
        K("s_barrier")
        if i in (1, 2, 3, 4, 8, 12): STH(39 + 2*(1,2,3,4,8,12).index(i))
    bars["H"].append("G2.loop15")
    BAR("D5")
    K(f"s_cmp_eq_u32 s{S_LAYER}, 1")
    K("s_cbranch_scc1 L_hfinal")
    BAR("S5")
    stats_store(X2_SX, f"{WS_STX2:#x}")
    K(f"s_mov_b32 s{SIB}, s{S_CT}")
    for s_ in range(3): issueW(g1buf(s_))
    zero_sync(XA_SY)
    K(f"s_mov_b32 s{S_LAYER}, 1")
    K(f"s_mov_b32 s{S_XAOFF}, {WS_XA[1]:#x}")
    K(f"s_mov_b32 s{S_STXA}, {WS_STXA[1]:#x}")
    K(f"s_mov_b32 s{S_KVPOFF}, {WS_KVP[1]:#x}")
    K(f"s_mov_b32 s{S_OOFF}, {WS_O[1]:#x}")
    K("s_waitcnt vmcnt(0)")
    K("s_branch L_hlayer")
    K.label("L_hfinal")
    K("s_barrier")
    tile_store4(OUT_TB, srd(S_OUT), f"s{SCT7}", sc="")
    if stamp:
        K("s_waitcnt vmcnt(0)")
        STH(12)
        K(f"s_lshl_b32 s{T0}, s2, 3")
        K(f"s_add_u32 s{T0}, s{T0}, s{S_W}")
        K(f"s_lshl_b32 s{T0}, s{T0}, 8")
        K(f"s_add_u32 s{T0}, s{T0}, {200*MB:#x}")
        K("v_lshlrev_b32 v5, 2, v1")
        K(f"buffer_store_dword v{STV}, v5, {WS}, s{T0} offen")
    K.label("L_done")
    K("s_endpgm")
    assert bars["C"] == bars["H"], (bars["C"], bars["H"])
    return K

if __name__ == "__main__":
    stamp = len(sys.argv) > 2 and sys.argv[2] == "stamp"
    K = gen(stamp=stamp)
    hdr = HEADER + f"; @launch grid=(256,1,1) block=(512,1,1) lds={LDS_TOTAL}\n"
    txt = hdr + '.amdgcn_target "amdgcn-amd-amdhsa--gfx950"\n.text\n' + K.text() + '.section .rodata,"a"\n.p2align 6\n' + K.desc()
    open(sys.argv[1], "w").write(txt)
    print(len(txt), "bytes")
```
